```python
import torch

def _softmax(x, axis=-1):
    return torch.softmax(x, dim=axis)
def _gelu(x):
    return torch.nn.functional.gelu(x, approximate="tanh")
def _silu(x):
    return torch.nn.functional.silu(x)
def _sigmoid(x):
    return torch.sigmoid(x)
def _layernorm(x, axis=-1, eps=1e-5):
    m = x.mean(dim=axis, keepdim=True)
    v = x.var(dim=axis, keepdim=True, unbiased=False)
    return (x - m) / torch.sqrt(v + eps)
def _scatter_add(tgt, idx, src, axis=0):
    return tgt.clone().index_add_(axis, idx, src)
def _segment_sum(src, seg, n):
    out = torch.zeros((n,) + src.shape[1:], dtype=src.dtype)
    return out.index_add_(0, seg, src)
def _pad(x, pw):
    flat = tuple(v for pair in reversed(pw) for v in pair)
    return torch.nn.functional.pad(x, flat)

kernel_name = 'sequential_preLN__gqa_block_cached__geglu_ffn__decode'

def setup_inputs():

    _w = (lambda a: (lambda t: t.to(torch.bfloat16) if t.is_floating_point() else t)(torch.as_tensor(a)))
    def _A_setup():
        B, Sq, D = 8, 1, 576
        Hq, Hkv, Sk, Dh = 32, 16, 4096, 128
        assert Hq % Hkv == 0, (Hq, Hkv)
        return {
            "x": _w((lambda *s: torch.randn(*s, dtype=torch.bfloat16) * 0.05)(B, Sq, D)),
            "k_cache": _w((lambda *s: torch.randn(*s, dtype=torch.bfloat16) * 3.2)(B, Hkv, Sk, Dh)),
            "v_cache": _w((lambda *s: torch.randn(*s, dtype=torch.bfloat16) * 0.4)(B, Hkv, Sk, Dh)),
            "wq": _w((lambda *s: torch.randn(*s, dtype=torch.bfloat16) * 3.2)(D, Hq * Dh) * (D ** -0.5)),
            "wo": _w((lambda *s: torch.randn(*s, dtype=torch.bfloat16) * 0.4)(Hq * Dh, D) * ((Hq * Dh) ** -0.5)),
        }
    _A_in = _A_setup()

    def _B_setup():
        B, S, D, F = 8, 1, 576, 4608
        return {
            "x": _w((lambda *s: torch.randn(*s, dtype=torch.bfloat16) * 0.05)(B, S, D)),
            "w_gate": _w((lambda *s: torch.randn(*s, dtype=torch.bfloat16) * 0.05)(D, F)),
            "w_up": _w((lambda *s: torch.randn(*s, dtype=torch.bfloat16) * 0.05)(D, F)),
            "w_down": _w((lambda *s: torch.randn(*s, dtype=torch.bfloat16) * 0.05)(F, D)),
        }
    _B_in = _B_setup()

    return {
        "A_x": _A_in["x"],
        "A_k_cache": _A_in["k_cache"],
        "A_v_cache": _A_in["v_cache"],
        "A_wq": _A_in["wq"],
        "A_wo": _A_in["wo"],
        "B_x": _B_in["x"],
        "B_w_gate": _B_in["w_gate"],
        "B_w_up": _B_in["w_up"],
        "B_w_down": _B_in["w_down"],
    }

def reference(A_x, A_k_cache, A_v_cache, A_wq, A_wo, B_x, B_w_gate, B_w_up, B_w_down):
    def _A_ref(x, k_cache, v_cache, wq, wo):
        B, Sq, D = x.shape
        Hq, Dh = 32, 128
        Hkv = k_cache.shape[1]
        rep = Hq // Hkv
        q = (lambda x, *d: x.permute(*d))((x @ wq).reshape(B, Sq, Hq, Dh), 0, 2, 1, 3)
        k = (lambda x, n, axis: torch.repeat_interleave(x, n, dim=axis))(k_cache, rep, axis=1)
        v = (lambda x, n, axis: torch.repeat_interleave(x, n, dim=axis))(v_cache, rep, axis=1)
        scores = torch.einsum("bhqd,bhkd->bhqk", q, k) * (Dh ** -0.5)
        p = _softmax(scores, axis=-1)
        o = torch.einsum("bhqk,bhkd->bhqd", p, v)
        return (lambda x, *d: x.permute(*d))(o, 0, 2, 1, 3).reshape(B, Sq, Hq * Dh) @ wo

    def _B_ref(x, w_gate, w_up, w_down):
        return (_gelu(x @ w_gate) * (x @ w_up)) @ w_down

    x = A_x
    h = x + _A_ref(_layernorm(x, axis=-1), A_k_cache, A_v_cache, A_wq, A_wo)
    h2 = h + _B_ref(_layernorm(h, axis=-1), B_w_gate, B_w_up, B_w_down)
    return h2
```

```python
import sys

KN = "sequential_preLN__gqa_block_cached__geglu_ffn__decode_kernel"

WS_ML = 0x10000
WS_OP = 0x20000
WS_AOP = 0x60000
WS_H = 0xB0000
WS_DNP = 0x100000
WS_Q = 0x400000
WS_FQ = 0x480000
WS_FI = 0x490000
WS_TS = 0x500000
WS_SIZE = 0x20000000

LOG2E = 0x3FB8AA3B
SCALE = 0x3DB504F3
INV576 = 0x3AE38E39
EPS = 0x3727C5AC


def gen(R=6, Wn=5, NV=6, POL_KV="nt", POL_W="nt", TS=False, maxper=1, AW=4, TSQ=False, QSLEEP=0, W0=None, Wend=None, Tend=48, DYN=None, CKPT=(12, 22, 32, 44, 54), THR=((64, 4), (160, 5), (224, 6), (999, 7)), ROLEW=0, TROLE=32):
    L = []
    lab = [0]
    if W0 is None:
        W0 = Wn

    def g(s):
        L.append("  " + s)

    def label(n):
        L.append(n + ":")

    def nl(p):
        lab[0] += 1
        return f"L_{p}_{lab[0]}"

    F_XN, F_INIT, F_Q, F_ML, F_MLO, F_RED, F_S0, F_S1, F_S2, F_S3, F_QS, F_GC, F_MODE = [4 * i for i in range(13)]
    NLDS = 336
    MLW = 256
    MLR = 320
    QL = 512
    GU = 1024
    RED = 2048
    OB = 6144
    OBS = 528
    XN = 10368
    XNS = 1168
    PBUF = 19712
    STG = 27904
    RING = 64768
    LDS_TOTAL = RING + 4 * R * 4096
    assert LDS_TOTAL <= 163840, LDS_TOTAL
    assert R % 2 == 0 and NV % 2 == 0 and NV <= 6

    TMO_LDS = 4000000
    TMO_G = 400000

    L.append(f"; @launch grid=(256,1,1) block=(512,1,1) lds={LDS_TOTAL}")
    L.append('.amdgcn_target "amdgcn-amd-amdhsa--gfx950"')
    L.append(".text")
    L.append(f".globl {KN}")
    L.append(".p2align 8")
    L.append(f".type {KN},@function")
    label(KN)

    def srd(base, plo, size):
        g(f"s_mov_b32 s{base}, s{plo}")
        g(f"s_and_b32 s{base+1}, s{plo+1}, 0xffff")
        g(f"s_mov_b32 s{base+2}, {hex(size)}")
        g(f"s_mov_b32 s{base+3}, 0x20000")

    def stampq(idx):
        if TS and TSQ:
            g(f"s_memrealtime s[{72+2*idx}:{73+2*idx}]")

    def stamp(idx, aux=False):
        if TS and not (TSQ and aux and idx >= 5):
            g(f"s_memrealtime s[{72+2*idx}:{73+2*idx}]")

    def spin_tail(lp, sleep=0):
        if sleep:
            g(f"s_sleep {sleep}")
        g("s_sub_u32 s94, s94, 1")
        g("s_cmp_lg_u32 s94, 0")
        g(f"s_cbranch_scc1 {lp}")
        g("s_branch L_end")

    def lds_wait_ge(off, val, vt, sleep=1):
        l = nl("lw")
        d = nl("lwd")
        g(f"s_mov_b32 s94, {TMO_LDS}")
        label(l)
        g(f"ds_read_b32 {vt}, v2 offset:{off}")
        g("s_waitcnt lgkmcnt(0)")
        g(f"v_readfirstlane_b32 s95, {vt}")
        g(f"s_cmp_ge_u32 s95, {val}")
        g(f"s_cbranch_scc1 {d}")
        spin_tail(l, sleep)
        label(d)

    def lds_signal(off):
        g("s_mov_b64 exec, 1")
        g(f"ds_add_u32 v2, v3 offset:{off}")
        g("s_mov_b64 exec, -1")

    def exec_mask(m):
        g(f"s_mov_b32 exec_lo, {hex(m & 0xFFFFFFFF)}")
        g(f"s_mov_b32 exec_hi, {hex(m >> 32)}")

    def exec_all():
        g("s_mov_b64 exec, -1")

    def unpack(lo, hi, src):
        g(f"v_lshlrev_b32 {lo}, 16, {src}")
        g(f"v_and_b32 {hi}, 0xffff0000, {src}")

    def dpp_op(op, dst, src, ctrl):
        g(f"{op}_dpp {dst}, {src}, {src} {ctrl} row_mask:0xf bank_mask:0xf")

    def allreduce(op, v, t, full=True):
        for ctrl in ("quad_perm:[1,0,3,2]", "quad_perm:[2,3,0,1]", "row_half_mirror", "row_mirror"):
            g("s_nop 1")
            dpp_op(op, v, v, ctrl)
        g(f"v_mov_b32 {t}, {v}")
        g("s_nop 1")
        g(f"v_permlane16_swap_b32 {v}, {t}")
        g("s_nop 1")
        g(f"{op} {v}, {v}, {t}")
        if full:
            g(f"v_mov_b32 {t}, {v}")
            g("s_nop 1")
            g(f"v_permlane32_swap_b32 {v}, {t}")
            g("s_nop 1")
            g(f"{op} {v}, {v}, {t}")

    def poll_tagged(loads_fn, regs, tmp, sleep=0, name="pt"):
        lp = nl(name)
        dn = nl(name + "d")
        g(f"s_mov_b32 s94, {TMO_G}")
        label(lp)
        loads_fn()
        g("s_waitcnt vmcnt(0)")
        rs = list(regs)
        if len(rs) == 1:
            g(f"v_cmp_eq_u32 vcc, -1, v{rs[0]}")
        else:
            h = (len(rs) + 1) // 2
            chains = [rs[:h], rs[h:]] if len(rs) >= 6 else [rs]
            tt = [tmp[0], tmp[1]]
            seqs = []
            for ci, ch in enumerate(chains):
                sq = []
                t = tt[ci]
                if len(ch) >= 3:
                    sq.append(f"v_max3_u32 {t}, v{ch[0]}, v{ch[1]}, v{ch[2]}")
                    rest = ch[3:]
                else:
                    sq.append(f"v_max_u32 {t}, v{ch[0]}, v{ch[1]}")
                    rest = ch[2:]
                while len(rest) >= 2:
                    sq.append(f"v_max3_u32 {t}, {t}, v{rest[0]}, v{rest[1]}")
                    rest = rest[2:]
                if rest:
                    sq.append(f"v_max_u32 {t}, {t}, v{rest[0]}")
                seqs.append(sq)
            for i in range(max(len(s_) for s_ in seqs)):
                for s_ in seqs:
                    if i < len(s_):
                        g(s_[i])
            if len(chains) == 2:
                g(f"v_max_u32 {tt[0]}, {tt[0]}, {tt[1]}")
            g(f"v_cmp_eq_u32 vcc, -1, {tt[0]}")
        g("s_cmp_eq_u64 vcc, 0")
        g(f"s_cbranch_scc1 {dn}")
        spin_tail(lp, sleep)
        label(dn)

    g("s_cmp_ge_u32 s2, 256")
    g("s_cbranch_scc1 L_end")
    g("s_load_dwordx16 s[4:19], s[0:1], 0")
    g("s_load_dwordx8 s[20:27], s[0:1], 64")
    if TS:
        for i in range(72, 92):
            g(f"s_mov_b32 s{i}, 0")
    stamp(0)
    g("v_and_b32 v1, 63, v0")
    g("v_lshrrev_b32 v4, 6, v0")
    g("v_mov_b32 v2, 0")
    g("v_mov_b32 v3, 1")
    g("v_readfirstlane_b32 s3, v4")
    g("v_lshrrev_b32 v7, 4, v1")
    g("v_and_b32 v8, 15, v1")
    g("s_and_b32 s28, s2, 7")
    g("s_lshr_b32 s29, s2, 3")
    g("s_lshr_b32 s64, s29, 4")
    g("s_lshl_b32 s30, s28, 1")
    g("s_add_u32 s30, s30, s64")
    g("s_and_b32 s33, s29, 15")
    g("s_lshr_b32 s31, s33, 1")
    g("s_and_b32 s32, s33, 1")
    g("s_lshl_b32 s38, s30, 4")
    g("s_add_u32 s38, s38, s33")
    g("s_mul_i32 s34, s28, 18")
    g("s_add_u32 s34, s34, s29")
    g("s_cmp_lt_u32 s3, 4")
    g("s_cbranch_scc1 L_stream")

    RAW = 10
    UN = 20
    A = [f"v{40+i}" for i in range(24)]
    WO = 64
    WD = 96
    WG = 132
    PB = 204
    QB = 132
    NONCE = 254
    g("s_sub_u32 s39, s3, 4")
    g(f"v_lshrrev_b32 {A[0]}, 5, v1")
    g(f"v_mul_u32_u24 {A[2]}, 1152, {A[0]}")
    g(f"v_and_b32 {A[1]}, 31, v1")
    g(f"v_lshl_add_u32 v9, {A[1]}, 2, {A[2]}")
    g("s_mul_i32 s64, s39, 2304")
    g("s_waitcnt lgkmcnt(0)")
    srd(60, 4, 8 * 576 * 2)
    for i in range(9):
        g(f"buffer_load_dword v{RAW+i}, v9, s[60:63], s64 offen offset:{128*i}")
    srd(52, 26, WS_SIZE)
    srd(56, 24, 256)
    g("s_cmp_eq_u32 s39, 0")
    g("s_cbranch_scc0 L_a_not0")
    srd(48, 10, 576 * 4096 * 2)
    g(f"v_lshrrev_b32 {A[3]}, 3, v1")
    g(f"v_lshlrev_b32 {A[3]}, 13, {A[3]}")
    g(f"v_and_b32 {A[4]}, 7, v1")
    g(f"v_lshl_add_u32 {A[2]}, {A[4]}, 4, {A[3]}")
    g("s_and_b32 s35, s33, 3")
    g("s_lshr_b32 s36, s33, 2")
    g("s_mul_i32 s37, s35, 5")
    g("s_cmp_eq_u32 s35, 3")
    g("s_cselect_b32 s37, 14, s37")
    g("s_lshl_b32 s68, s37, 18")
    g("s_lshl_b32 s64, s30, 9")
    g("s_add_u32 s68, s68, s64")
    g("s_lshl_b32 s64, s36, 7")
    g("s_add_u32 s68, s68, s64")
    for i in range(20):
        if i == 16:
            g("s_cmp_ge_u32 s35, 2")
            g("s_cbranch_scc1 L_a0_wqd")
        g(f"s_mov_b32 m0, {STG+1024*i}")
        g(f"s_add_u32 s67, s68, {i*8*8192}")
        g(f"buffer_load_dwordx4 {A[2]}, s[48:51], s67 offen {POL_W} lds")
    label("L_a0_wqd")
    g("s_cmp_eq_u32 s2, 0")
    g("s_cbranch_scc0 L_a0_nn")
    g("s_memrealtime s[92:93]")
    g("s_waitcnt lgkmcnt(0)")
    g("s_or_b32 s92, s92, 1")
    g(f"v_mov_b32 {A[4]}, s92")
    g(f"v_mov_b32 {A[5]}, s93")
    g("s_mov_b64 exec, 1")
    g(f"buffer_store_dwordx2 v[44:45], v2, s[56:59], 0 offen sc1")
    exec_all()
    label("L_a0_nn")
    g(f"v_lshlrev_b32 {A[3]}, 2, v1")
    g(f"ds_write_b32 {A[3]}, v2")
    if DYN:
        g(f"s_cmp_lt_u32 s29, 18")
        g(f"s_cselect_b32 s64, {Wn+ROLEW}, {Wn}")
        g(f"v_mov_b32 {A[3]}, s64")
        g(f"ds_write_b32 v2, {A[3]} offset:{F_MODE}")
    g("s_waitcnt lgkmcnt(0)")
    label("L_a_not0")
    g("s_barrier")
    g(f"v_mul_u32_u24 {A[0]}, {XNS}, {A[0]}")
    g(f"v_lshl_add_u32 {A[0]}, {A[1]}, 2, {A[0]}")
    g(f"s_mul_i32 s64, s39, {2*XNS}")
    g(f"v_add_u32 v6, s64, {A[0]}")
    g(f"v_bfe_u32 {A[0]}, v1, 2, 2")
    g(f"v_lshl_add_u32 v5, v7, 3, {A[0]}")
    g(f"v_and_b32 {A[1]}, 3, v1")
    g(f"v_lshlrev_b32 v38, 3, {A[1]}")
    g(f"v_and_b32 {A[0]}, 7, v8")
    g(f"v_mul_u32_u24 {A[0]}, {XNS}, {A[0]}")
    g(f"v_lshl_add_u32 v4, v7, 4, {A[0]}")
    g("s_cmp_eq_u32 s39, 0")
    g("s_cbranch_scc1 L_a0_xw")
    g("s_waitcnt vmcnt(0)")
    label("L_a0_xw")
    g("s_waitcnt vmcnt(16)")
    stampq(5)

    def pk(op, d, a, b, c=None, mods=""):
        if c is None:
            g(f"{op} v[{d}:{d+1}], v[{a}:{a+1}], v[{b}:{b+1}] {mods}".rstrip())
        else:
            g(f"{op} v[{d}:{d+1}], v[{a}:{a+1}], v[{b}:{b+1}], v[{c}:{c+1}] {mods}".rstrip())

    def ln_body():
        for i in range(9):
            unpack(f"v{UN+2*i}", f"v{UN+2*i+1}", f"v{RAW+i}")
        pk("v_pk_add_f32", 40, UN + 0, UN + 2)
        pk("v_pk_add_f32", 42, UN + 4, UN + 6)
        pk("v_pk_add_f32", 44, UN + 8, UN + 10)
        pk("v_pk_add_f32", 46, UN + 12, UN + 14)
        pk("v_pk_add_f32", 40, 40, UN + 16)
        pk("v_pk_add_f32", 42, 42, 44)
        pk("v_pk_add_f32", 40, 40, 46)
        pk("v_pk_add_f32", 40, 40, 42)
        g("v_add_f32 v40, v40, v41")
        allreduce("v_add_f32", "v40", "v41", full=False)
        g(f"v_mul_f32 v40, {hex(INV576)}, v40")
        g("v_mov_b32 v41, v40")
        for i in range(9):
            d = 44 + 2 * (i % 3)
            acc = 50 + 2 * (i % 3)
            pk("v_pk_add_f32", d, UN + 2 * i, 40, mods="neg_lo:[0,1] neg_hi:[0,1]")
            if i < 3:
                pk("v_pk_mul_f32", acc, d, d)
            else:
                pk("v_pk_fma_f32", acc, d, d, acc)
        pk("v_pk_add_f32", 50, 50, 52)
        pk("v_pk_add_f32", 50, 50, 54)
        g("v_add_f32 v42, v50, v51")
        allreduce("v_add_f32", "v42", "v43", full=False)
        g(f"v_mul_f32 v42, {hex(INV576)}, v42")
        g("v_cvt_pk_bf16_f32 v43, v40, v42")
        unpack("v44", "v46", "v43")
        g("v_mov_b32 v45, v44")
        g(f"v_add_f32 v46, {hex(EPS)}, v46")
        g("v_cvt_pk_bf16_f32 v46, v46, v46")
        g("v_lshlrev_b32 v46, 16, v46")
        g("v_sqrt_f32 v46, v46")
        for i in range(9):
            pk("v_pk_add_f32", UN + 2 * i, UN + 2 * i, 44, mods="neg_lo:[0,1] neg_hi:[0,1]")
        g("v_cvt_pk_bf16_f32 v46, v46, v46")
        g("v_lshlrev_b32 v46, 16, v46")
        g("v_rcp_f32 v46, v46")
        for i in range(9):
            g(f"v_cvt_pk_bf16_f32 v{RAW+i}, v{UN+2*i}, v{UN+2*i+1}")
        g("v_mov_b32 v47, v46")
        for i in range(9):
            unpack(f"v{UN+2*i}", f"v{UN+2*i+1}", f"v{RAW+i}")
        for i in range(9):
            pk("v_pk_mul_f32", UN + 2 * i, UN + 2 * i, 46)
        for i in range(9):
            g(f"v_cvt_pk_bf16_f32 v{RAW+i}, v{UN+2*i}, v{UN+2*i+1}")
            g(f"ds_write_b32 v6, v{RAW+i} offset:{XN+128*i}")

    ln_body()
    lds_signal(F_XN)
    g("s_cmp_eq_u32 s39, 0")
    g("s_cbranch_scc0 L_a_init")

    g(f"buffer_load_dwordx2 v[{NONCE}:{NONCE+1}], v2, s[56:59], 0 offen sc1")
    g(f"v_lshl_add_u32 {A[3]}, v5, 7, v38")
    g("s_lshl_b32 s64, s37, 6")
    g(f"v_add_u32 {A[4]}, s64, v4")
    lds_wait_ge(F_XN, 4, A[0], sleep=0)
    stampq(6)
    g("s_waitcnt vmcnt(1)")
    stampq(7)
    QD = QB + 48
    for ksl in range(5):
        if ksl == 4:
            g("s_cmp_ge_u32 s35, 2")
            g("s_cbranch_scc1 L_a0_qdone")
        rb = QB + 24 * (ksl & 1)
        g(f"ds_read_b128 v[{rb+16}:{rb+19}], {A[4]} offset:{XN+64*ksl}")
        for nt in range(4):
            r = rb + 4 * nt
            o = STG + 4096 * ksl + 32 * nt
            g(f"ds_read_b64_tr_b16 v[{r}:{r+1}], {A[3]} offset:{o}")
            g(f"ds_read_b64_tr_b16 v[{r+2}:{r+3}], {A[3]} offset:{o+512}")
        for nt in range(4):
            r = rb + 4 * nt
            d = QD + 4 * nt
            g(f"s_waitcnt lgkmcnt({6-2*nt})")
            c = "0" if ksl == 0 else f"v[{d}:{d+3}]"
            g(f"v_mfma_f32_16x16x32_bf16 v[{d}:{d+3}], v[{r}:{r+3}], v[{rb+16}:{rb+19}], {c}")
    label("L_a0_qdone")
    g(f"v_lshlrev_b32 {A[2]}, 14, v8")
    g(f"v_lshl_add_u32 {A[2]}, v7, 4, {A[2]}")
    g("s_lshl_b32 s64, s35, 17")
    g("s_lshl_b32 s67, s30, 10")
    g("s_add_u32 s64, s64, s67")
    g("s_lshl_b32 s67, s36, 8")
    g("s_add_u32 s64, s64, s67")
    g(f"s_add_u32 s64, s64, {WS_Q}")
    g("s_nop 3")
    exec_mask(0x00FF00FF00FF00FF)
    stampq(8)
    for nt in range(4):
        d = QD + 4 * nt
        g(f"buffer_store_dwordx4 v[{d}:{d+3}], {A[2]}, s[52:55], s64 offen offset:{64*nt} sc1")
    exec_all()
    lp = nl("nz")
    dn = nl("nzd")
    g(f"s_mov_b32 s94, {TMO_G}")
    label(lp)
    g("s_waitcnt vmcnt(0)")
    g(f"v_readfirstlane_b32 s92, v{NONCE}")
    g(f"v_readfirstlane_b32 s93, v{NONCE+1}")
    g("s_cmp_lg_u32 s92, 0")
    g(f"s_cbranch_scc1 {dn}")
    g("s_sleep 4")
    g(f"buffer_load_dwordx2 v[{NONCE}:{NONCE+1}], v2, s[56:59], 0 offen sc1")
    spin_tail(lp)
    label(dn)
    g("s_lshl_b32 s64, s38, 7")
    g(f"s_add_u32 s64, s64, {WS_FQ}")
    g("s_mov_b64 exec, 1")
    g(f"buffer_store_dwordx2 v[{NONCE}:{NONCE+1}], v2, s[52:55], s64 offen sc1")
    g(f"ds_write_b64 v2, v[{NONCE}:{NONCE+1}] offset:{NLDS}")
    g(f"ds_add_u32 v2, v3 offset:{F_QS}")
    stamp(1)
    g("s_mov_b64 exec, 0xffff")
    g(f"v_lshlrev_b32 {A[2]}, 7, v1")
    g("s_lshl_b32 s64, s30, 11")
    g(f"s_add_u32 s64, s64, {WS_FQ}")
    lp = nl("qf")
    dn = nl("qfd")
    g(f"s_mov_b32 s94, {TMO_G}")
    label(lp)
    g(f"buffer_load_dwordx2 v[44:45], {A[2]}, s[52:55], s64 offen sc1")
    g("s_waitcnt vmcnt(0)")
    g("v_xor_b32 v44, s92, v44")
    g("v_xor_b32 v45, s93, v45")
    g("v_or_b32 v44, v44, v45")
    g("v_cmp_ne_u32 vcc, 0, v44")
    g("s_cmp_eq_u64 vcc, 0")
    g(f"s_cbranch_scc1 {dn}")
    spin_tail(lp, QSLEEP)
    label(dn)
    stampq(9)
    exec_all()
    g(f"v_lshlrev_b32 {A[2]}, 4, v1")
    g("s_lshl_b32 s64, s31, 14")
    g("s_lshl_b32 s67, s30, 10")
    g("s_add_u32 s64, s64, s67")
    g(f"s_add_u32 s64, s64, {WS_Q}")
    for kp in range(4):
        g(f"s_add_u32 s67, s64, {kp*131072}")
        g(f"buffer_load_dwordx4 v[{QB+4*kp}:{QB+4*kp+3}], {A[2]}, s[52:55], s67 offen sc1")
    g(f"v_lshlrev_b32 {A[3]}, 3, v1")
    g("s_waitcnt vmcnt(0)")
    for i in range(4):
        g(f"v_add_f32 v{QB+i}, v{QB+i}, v{QB+4+i}")
        g(f"v_add_f32 v{QB+8+i}, v{QB+8+i}, v{QB+12+i}")
    for i in range(4):
        g(f"v_add_f32 v{QB+i}, v{QB+i}, v{QB+8+i}")
    g(f"v_cvt_pk_bf16_f32 v{QB}, v{QB}, v{QB+1}")
    g(f"v_cvt_pk_bf16_f32 v{QB+1}, v{QB+2}, v{QB+3}")
    g(f"ds_write_b64 {A[3]}, v[{QB}:{QB+1}] offset:{QL}")
    lds_signal(F_Q)
    stamp(2)
    g("s_branch L_a_pref")

    label("L_a_init")
    lds_wait_ge(F_QS, 1, A[0], sleep=2)
    for i in range(4):
        g(f"v_mov_b32 v{PB+i}, -1")
    g(f"v_lshlrev_b32 {A[0]}, 4, v1")
    g("s_cmp_eq_u32 s39, 1")
    g("s_cbranch_scc0 L_a_23")
    g("s_lshl_b32 s64, s38, 10")
    g(f"s_add_u32 s64, s64, {WS_OP}")
    g(f"buffer_store_dwordx4 v[{PB}:{PB+3}], {A[0]}, s[52:55], s64 offen sc1")
    g("s_lshl_b32 s64, s38, 6")
    g(f"s_add_u32 s64, s64, {WS_ML}")
    g("s_mov_b64 exec, 1")
    g(f"buffer_store_dwordx4 v[{PB}:{PB+3}], {A[0]}, s[52:55], s64 offen sc1")
    exec_all()
    g("s_cmp_lt_u32 s33, 9")
    g("s_cbranch_scc0 L_a1_noo")
    g(f"v_mul_u32_u24 {A[1]}, 2304, v7")
    g(f"v_lshl_add_u32 {A[1]}, v8, 4, {A[1]}")
    g("s_mul_i32 s64, s30, 18432")
    g("s_lshl_b32 s67, s33, 8")
    g("s_add_u32 s64, s64, s67")
    g(f"s_add_u32 s64, s64, {WS_AOP}")
    g(f"buffer_store_dwordx4 v[{PB}:{PB+3}], {A[1]}, s[52:55], s64 offen sc1")
    g(f"s_add_u32 s64, s64, {4*2304}")
    g(f"buffer_store_dwordx4 v[{PB}:{PB+3}], {A[1]}, s[52:55], s64 offen sc1")
    label("L_a1_noo")
    g("s_cmp_ge_u32 s29, 23")
    g("s_cbranch_scc0 L_a_iw")
    g("s_sub_u32 s64, s29, 23")
    g("s_lshl_b32 s64, s64, 7")
    g("s_mul_i32 s67, s28, 1152")
    g("s_add_u32 s64, s64, s67")
    g(f"s_add_u32 s64, s64, {WS_H}")
    g("s_mov_b64 exec, 0xff")
    g(f"buffer_store_dwordx4 v[{PB}:{PB+3}], {A[0]}, s[52:55], s64 offen sc1")
    exec_all()
    g("s_branch L_a_iw")
    label("L_a_23")
    g("s_cmp_lt_u32 s29, 18")
    g("s_cbranch_scc0 L_a_iw")
    g("s_mul_i32 s64, s34, 18432")
    g("s_sub_u32 s67, s39, 2")
    g("s_mul_i32 s67, s67, 9216")
    g("s_add_u32 s64, s64, s67")
    g(f"s_add_u32 s64, s64, {WS_DNP}")
    for i in range(9):
        if i in (4, 8):
            g("s_add_u32 s64, s64, 4096")
        g(f"buffer_store_dwordx4 v[{PB}:{PB+3}], {A[0]}, s[52:55], s64 offen offset:{(i%4)*1024} sc1")
    label("L_a_iw")
    g("s_waitcnt vmcnt(0)")
    lds_signal(F_INIT)
    g("s_cmp_eq_u32 s39, 1")
    g("s_cbranch_scc0 L_a_iw2")
    g(f"ds_read_b64 v[{NONCE}:{NONCE+1}], v2 offset:{NLDS}")
    lds_wait_ge(F_INIT, 3, A[0], sleep=1)
    g(f"v_readfirstlane_b32 s92, v{NONCE}")
    g(f"v_readfirstlane_b32 s93, v{NONCE+1}")
    g("s_lshl_b32 s64, s38, 3")
    g(f"s_add_u32 s64, s64, {WS_FI}")
    g("s_mov_b64 exec, 1")
    g(f"buffer_store_dwordx2 v[{NONCE}:{NONCE+1}], v2, s[52:55], s64 offen sc1")
    exec_all()
    label("L_a_iw2")
    lds_wait_ge(F_Q, 1, A[0], sleep=4)

    label("L_a_pref")

    def paced_dma(n, voff, m0fn, sofffn):
        for i in range(n):
            if i >= AW:
                g(f"s_waitcnt vmcnt({AW-1})")
            m0fn(i)
            sofffn(i)
            g(f"buffer_load_dwordx4 {voff}, s[48:51], s67 offen {POL_W} lds")
        g("s_waitcnt vmcnt(0)")

    g("s_cmp_lt_u32 s29, 18")
    g("s_cbranch_scc0 L_a_nogu")
    g("s_and_b32 s64, s39, 1")
    g("s_cmp_eq_u32 s64, 0")
    g("s_cselect_b32 s48, s16, s18")
    g("s_cselect_b32 s49, s17, s19")
    g("s_and_b32 s49, s49, 0xffff")
    g(f"s_mov_b32 s50, {hex(576*4608*2)}")
    g("s_mov_b32 s51, 0x20000")
    g("s_lshl_b32 s68, s34, 6")
    g("s_lshr_b32 s64, s39, 1")
    g(f"s_mul_i32 s64, s64, {288*9216}")
    g("s_add_u32 s68, s68, s64")
    g(f"v_lshrrev_b32 {A[0]}, 2, v1")
    g(f"v_mul_u32_u24 {A[0]}, 9216, {A[0]}")
    g(f"v_and_b32 {A[1]}, 3, v1")
    g(f"v_lshl_add_u32 {A[10]}, {A[1]}, 4, {A[0]}")
    g("s_mul_i32 s65, s39, 9216")
    g(f"s_add_u32 s65, s65, {STG}")
    g(f"v_lshl_add_u32 {A[3]}, v5, 6, v38")
    g(f"v_add_u32 {A[3]}, s65, {A[3]}")
    for (k0, k1) in ((0, 4), (4, 8), (8, 9)):
        n = 2 * (k1 - k0)
        paced_dma(n, A[10], lambda i: g(f"s_add_u32 m0, s65, {1024*i}"),
                  lambda i, k0=k0: g(f"s_add_u32 s67, s68, {(2*k0+i)*16*9216}"))
        for ks in range(k0, k1):
            for ct in range(2):
                r = WG + 4 * (2 * ks + ct)
                o = (ks - k0) * 2048 + 32 * ct
                g(f"ds_read_b64_tr_b16 v[{r}:{r+1}], {A[3]} offset:{o}")
                g(f"ds_read_b64_tr_b16 v[{r+2}:{r+3}], {A[3]} offset:{o+256}")
            if (ks - k0) % 2 == 1:
                g("s_waitcnt lgkmcnt(0)")
        g("s_waitcnt lgkmcnt(0)")
    lds_signal(F_S0)
    lds_wait_ge(F_S0, 4, A[0], sleep=2)
    label("L_a_nogu")
    g("s_cmp_eq_u32 s39, 1")
    g("s_cbranch_scc0 L_a_nogc")
    g(f"v_lshlrev_b32 {A[2]}, 4, v1")
    g(f"s_mov_b32 s64, {WS_FI}")
    lp = nl("af")
    dn = nl("afd")
    g(f"s_mov_b32 s94, {TMO_G}")
    label(lp)
    g(f"buffer_load_dwordx4 v[{PB}:{PB+3}], {A[2]}, s[52:55], s64 offen sc1")
    g(f"buffer_load_dwordx4 v[{PB+4}:{PB+7}], {A[2]}, s[52:55], s64 offen offset:1024 sc1")
    g("s_waitcnt vmcnt(0)")
    for i in range(8):
        g(f"v_xor_b32 v{PB+i}, s{92+(i&1)}, v{PB+i}")
    for i in range(1, 8):
        g(f"v_or_b32 v{PB}, v{PB}, v{PB+i}")
    g(f"v_cmp_ne_u32 vcc, 0, v{PB}")
    g("s_cmp_eq_u64 vcc, 0")
    g(f"s_cbranch_scc1 {dn}")
    spin_tail(lp, 32)
    label(dn)
    lds_signal(F_GC)
    stamp(4)
    label("L_a_nogc")
    g("s_cmp_lt_u32 s33, 9")
    g("s_cbranch_scc0 L_a_nowo")
    srd(48, 12, 4096 * 576 * 2)
    g(f"v_lshrrev_b32 {A[0]}, 3, v1")
    g(f"v_mul_u32_u24 {A[0]}, 1152, {A[0]}")
    g(f"v_and_b32 {A[1]}, 7, v1")
    g(f"v_lshl_add_u32 {A[10]}, {A[1]}, 4, {A[0]}")
    g(f"s_mul_i32 s68, s30, {256*1152}")
    g("s_lshl_b32 s64, s33, 7")
    g("s_add_u32 s68, s68, s64")
    g(f"s_mul_i32 s64, s39, {64*1152}")
    g("s_add_u32 s68, s68, s64")
    g("s_lshl_b32 s65, s39, 13")
    g(f"s_add_u32 s65, s65, {STG}")
    paced_dma(8, A[10], lambda i: g(f"s_add_u32 m0, s65, {1024*i}"), lambda i: g(f"s_add_u32 s67, s68, {i*8*1152}"))
    lds_signal(F_S1)
    g(f"v_lshl_add_u32 {A[3]}, v5, 7, v38")
    g("s_lshl_b32 s64, s39, 5")
    g(f"v_add_u32 {A[3]}, s64, {A[3]}")
    lds_wait_ge(F_S1, 4, A[0], sleep=2)
    for hb in range(2):
        for s_ in range(4 * hb, 4 * hb + 4):
            r = WO + 4 * s_
            g(f"ds_read_b64_tr_b16 v[{r}:{r+1}], {A[3]} offset:{STG+4096*s_}")
            g(f"ds_read_b64_tr_b16 v[{r+2}:{r+3}], {A[3]} offset:{STG+4096*s_+512}")
        g("s_waitcnt lgkmcnt(0)")
    lds_signal(F_S2)
    lds_wait_ge(F_S2, 4, A[0], sleep=2)
    label("L_a_nowo")
    g("s_cmp_lt_u32 s29, 18")
    g("s_cbranch_scc0 L_a_nowd")
    srd(48, 20, 4608 * 576 * 2)
    g(f"v_lshlrev_b32 {A[10]}, 4, v1")
    g("s_mul_i32 s68, s34, 36864")
    g("s_mul_i32 s64, s39, 9216")
    g("s_add_u32 s68, s68, s64")
    g(f"s_add_u32 s65, s64, {STG}")
    paced_dma(9, A[10], lambda i: g(f"s_add_u32 m0, s65, {1024*i}"), lambda i: g(f"s_add_u32 s67, s68, {i*1024}"))
    lds_signal(F_S3)
    g(f"v_mul_u32_u24 {A[3]}, 1152, v5")
    g(f"v_add_u32 {A[3]}, {A[3]}, v38")
    g("s_mul_i32 s64, s39, 288")
    g(f"v_add_u32 {A[3]}, s64, {A[3]}")
    lds_wait_ge(F_S3, 4, A[0], sleep=2)
    for t0 in (0, 5):
        for t in range(t0, min(t0 + 5, 9)):
            r = WD + 4 * t
            g(f"ds_read_b64_tr_b16 v[{r}:{r+1}], {A[3]} offset:{STG+32*t}")
            g(f"ds_read_b64_tr_b16 v[{r+2}:{r+3}], {A[3]} offset:{STG+32*t+4608}")
        g("s_waitcnt lgkmcnt(0)")
    label("L_a_nowd")
    stamp(3)

    label("L_a_tail")
    lds_wait_ge(F_GC, 1, A[0], sleep=8)
    lds_wait_ge(F_RED, 3, A[0], sleep=4)
    stamp(5, True)
    g("s_cmp_lt_u32 s33, 9")
    g("s_cbranch_scc0 L_a_noT1")
    g(f"v_lshlrev_b32 {A[0]}, 4, v1")
    g("s_lshl_b32 s64, s30, 14")
    g("s_lshl_b32 s67, s39, 12")
    g("s_add_u32 s64, s64, s67")
    g(f"s_add_u32 s64, s64, {WS_OP}")
    g(f"s_mul_i32 s67, s39, {2*OBS}")
    g(f"v_lshl_add_u32 {A[3]}, v1, 3, s67")
    g(f"v_and_b32 {A[4]}, 7, v8")
    g(f"v_mul_u32_u24 {A[4]}, {OBS}, {A[4]}")
    g(f"v_lshl_add_u32 {A[4]}, v7, 4, {A[4]}")
    g(f"v_mul_u32_u24 {A[5]}, 2304, v8")
    g(f"v_lshl_add_u32 {A[5]}, v7, 4, {A[5]}")
    g("s_mul_i32 s71, s30, 18432")
    g("s_lshl_b32 s67, s33, 8")
    g("s_add_u32 s71, s71, s67")
    g("s_lshl_b32 s67, s39, 6")
    g("s_add_u32 s71, s71, s67")
    g(f"s_add_u32 s71, s71, {WS_AOP}")

    def t1loads():
        for k in range(4):
            g(f"buffer_load_dwordx4 v[{PB+4*k}:{PB+4*k+3}], {A[0]}, s[52:55], s64 offen offset:{1024*k} sc1")
    poll_tagged(t1loads, range(PB, PB + 16), [A[1], A[2]], name="t1")
    stamp(6, True)
    for bb in range(2):
        r = PB + 8 * bb
        pk("v_pk_add_f32", r, r, r + 4)
        pk("v_pk_add_f32", r + 2, r + 2, r + 6)
    for bb in range(2):
        r = PB + 8 * bb
        g(f"v_cvt_pk_bf16_f32 v{r}, v{r}, v{r+1}")
        g(f"v_cvt_pk_bf16_f32 v{r+1}, v{r+2}, v{r+3}")
        g(f"ds_write_b64 {A[3]}, v[{r}:{r+1}] offset:{OB+OBS*bb}")
    g("s_waitcnt lgkmcnt(0)")
    g("s_barrier")
    for s in range(8):
        g(f"ds_read_b128 v[{PB+4*s}:{PB+4*s+3}], {A[4]} offset:{OB+64*s}")
    for s in range(8):
        g(f"s_waitcnt lgkmcnt({7-s})")
        d = 56 + 4 * (s & 1)
        c = "0" if s < 2 else f"v[{d}:{d+3}]"
        g(f"v_mfma_f32_16x16x32_bf16 v[{d}:{d+3}], v[{WO+4*s}:{WO+4*s+3}], v[{PB+4*s}:{PB+4*s+3}], {c}")
    exec_mask(0x00FF00FF00FF00FF)
    g("s_nop 6")
    pk("v_pk_add_f32", 56, 56, 60)
    pk("v_pk_add_f32", 58, 58, 62)
    for i in range(4):
        g(f"v_min_u32 v{56+i}, -2, v{56+i}")
    g(f"buffer_store_dwordx4 v[56:59], {A[5]}, s[52:55], s71 offen sc1")
    exec_all()
    label("L_a_noT1")
    stamp(7, True)
    g("s_cmp_eq_u32 s39, 1")
    g("s_cbranch_scc0 L_a_noT2")
    g("s_cmp_ge_u32 s29, 23")
    g("s_cbranch_scc0 L_a_noT2")
    g("s_sub_u32 s64, s29, 23")
    g("s_lshl_b32 s64, s64, 7")
    g("s_mul_i32 s67, s28, 1152")
    g("s_add_u32 s71, s64, s67")
    exec_mask(0xffffffff)
    g(f"v_lshlrev_b32 {A[0]}, 2, v1")
    g(f"v_lshlrev_b32 {A[1]}, 3, v1")
    g(f"buffer_load_dword {A[2]}, {A[0]}, s[60:63], s71 offen")
    g("s_lshl_b32 s67, s71, 1")
    g(f"s_add_u32 s67, s67, {WS_AOP}")
    g(f"s_add_u32 s71, s71, {WS_H}")

    def t2loads():
        for k in range(16):
            g(f"s_add_u32 s64, s67, {18432*k}")
            g(f"buffer_load_dwordx2 v[{PB+2*k}:{PB+2*k+1}], {A[1]}, s[52:55], s64 offen sc1")
    poll_tagged(t2loads, range(PB, PB + 32), [A[3], A[4]], name="t2")
    for st in (8, 4, 2, 1):
        for k in range(st):
            pk("v_pk_add_f32", PB + 2 * k, PB + 2 * k, PB + 2 * (k + st))
    g(f"v_cvt_pk_bf16_f32 {A[3]}, v{PB}, v{PB+1}")
    unpack(A[6], A[7], A[2])
    unpack(A[4], A[5], A[3])
    pk("v_pk_add_f32", 44, 44, 46)
    g(f"v_cvt_pk_bf16_f32 {A[3]}, {A[4]}, {A[5]}")
    g(f"v_min_u32 {A[3]}, -2, {A[3]}")
    g(f"buffer_store_dword {A[3]}, {A[0]}, s[52:55], s71 offen sc1")
    exec_all()
    label("L_a_noT2")
    g("s_cmp_lt_u32 s29, 18")
    g("s_cbranch_scc0 L_a_noT3")
    TA = 240
    g("s_mul_i32 s64, s39, 2304")
    g(f"s_add_u32 s64, s64, {WS_H}")
    g("s_lshr_b32 s67, s39, 1")
    g("s_mul_i32 s67, s67, 576")
    g(f"v_add_u32 v{TA}, s67, v4")
    g("s_and_b32 s67, s39, 1")
    g("s_lshl_b32 s67, s67, 1")
    g("s_lshr_b32 s71, s39, 1")
    g("s_add_u32 s67, s67, s71")
    g("s_lshl_b32 s67, s67, 10")
    g(f"v_lshlrev_b32 v{TA+1}, 7, v8")
    g(f"v_lshl_add_u32 v{TA+1}, v7, 4, v{TA+1}")
    g(f"v_add_u32 v{TA+1}, s67, v{TA+1}")
    g("s_lshl_b32 s67, s39, 8")
    g(f"v_lshl_add_u32 v{TA+2}, v1, 2, s67")
    g(f"v_lshrrev_b32 v{TA+3}, 1, v{TA+2}")
    g(f"v_and_b32 v{TA+4}, 7, v8")
    g(f"v_lshlrev_b32 v{TA+4}, 6, v{TA+4}")
    g(f"v_lshl_add_u32 v{TA+4}, v7, 4, v{TA+4}")
    g(f"v_mul_u32_u24 v{TA+5}, 2304, v8")
    g(f"v_lshl_add_u32 v{TA+5}, v7, 4, v{TA+5}")
    g("s_mul_i32 s65, s34, 18432")
    g("s_mul_i32 s67, s39, 576")
    g("s_add_u32 s65, s65, s67")
    g(f"s_add_u32 s65, s65, {WS_DNP}")
    g("s_mov_b32 s66, 0x3d372713")
    g("s_mov_b32 s67, 0x3f4c422a")
    g("s_mov_b32 s71, 0xc038aa3b")

    def t3loads():
        for i in range(9):
            g(f"buffer_load_dword v{RAW+i}, v9, s[52:55], s64 offen offset:{128*i} sc1")
    poll_tagged(t3loads, range(RAW, RAW + 9), [A[0], A[1]], name="t3")
    stamp(8, True)
    ln_body()
    g("s_waitcnt lgkmcnt(0)")
    g("s_barrier")
    for s_ in range(9):
        g(f"ds_read_b128 v[{PB+4*s_}:{PB+4*s_+3}], v{TA} offset:{XN+64*s_}")
    for s_ in range(9):
        g(f"s_waitcnt lgkmcnt({8-s_})")
        for ct in range(2):
            d = 56 + 4 * ct
            c = "0" if s_ == 0 else f"v[{d}:{d+3}]"
            w = WG + 4 * (2 * s_ + ct)
            g(f"v_mfma_f32_16x16x32_bf16 v[{d}:{d+3}], v[{w}:{w+3}], v[{PB+4*s_}:{PB+4*s_+3}], {c}")
    exec_mask(0x00FF00FF00FF00FF)
    g("s_nop 5")
    g(f"ds_write_b128 v{TA+1}, v[56:59] offset:{RED}")
    g(f"ds_write_b128 v{TA+1}, v[60:63] offset:{RED+64}")
    exec_all()
    g("s_waitcnt lgkmcnt(0)")
    g("s_barrier")
    for q_ in range(4):
        g(f"ds_read_b32 v{40+q_}, v{TA+2} offset:{RED+1024*q_}")
    g("s_waitcnt lgkmcnt(0)")
    g("v_add_f32 v40, v40, v41")
    g("v_add_f32 v42, v42, v43")
    g("v_cvt_pk_bf16_f32 v44, v40, v42")
    unpack("v40", "v42", "v44")
    x = "v40"
    t = "v45"
    g(f"v_mul_f32 {t}, {x}, {x}")
    g(f"v_mul_f32 {t}, {t}, {x}")
    g(f"v_fma_f32 {t}, {t}, s66, {x}")
    g(f"v_mul_f32 {t}, s67, {t}")
    g(f"v_mul_f32 {t}, s71, {t}")
    g(f"v_exp_f32 {t}, {t}")
    g(f"v_mul_f32 {x}, 0.5, {x}")
    g(f"v_add_f32 {t}, 1.0, {t}")
    g(f"v_rcp_f32 {t}, {t}")
    g("s_nop 0")
    g(f"v_add_f32 {t}, {t}, {t}")
    g(f"v_subrev_f32 {t}, 1.0, {t}")
    g(f"v_add_f32 {t}, 1.0, {t}")
    g(f"v_mul_f32 {x}, {x}, {t}")
    g("v_cvt_pk_bf16_f32 v44, v40, v40")
    g("v_lshlrev_b32 v40, 16, v44")
    g("v_mul_f32 v40, v40, v42")
    g("v_cvt_pk_bf16_f32 v44, v40, v40")
    g(f"ds_write_b16 v{TA+3}, v44 offset:{GU}")
    g("s_waitcnt lgkmcnt(0)")
    g("s_barrier")
    g(f"ds_read_b128 v[40:43], v{TA+4} offset:{GU}")
    g("s_waitcnt lgkmcnt(0)")
    for t_ in range(9):
        d = PB + 4 * t_
        g(f"v_mfma_f32_16x16x32_bf16 v[{d}:{d+3}], v[{WD+4*t_}:{WD+4*t_+3}], v[40:43], 0")
    exec_mask(0x00FF00FF00FF00FF)
    for t_ in range(9):
        d = PB + 4 * t_
        for i in range(4):
            g(f"v_min_u32 v{d+i}, -2, v{d+i}")
        g(f"buffer_store_dwordx4 v[{d}:{d+3}], v{TA+5}, s[52:55], s65 offen offset:{64*t_} sc1")
    exec_all()
    label("L_a_noT3")
    if not TSQ:
        stamp(9, True)
    g("s_cmp_eq_u32 s39, 2")
    g("s_cbranch_scc0 L_fin")
    g("s_cmp_ge_u32 s29, 14")
    g("s_cbranch_scc0 L_fin")
    g("s_sub_u32 s64, s29, 14")
    g("s_mul_i32 s67, s28, 1152")
    g("s_lshl_b32 s71, s64, 6")
    g("s_add_u32 s67, s67, s71")
    g(f"s_add_u32 s71, s67, {WS_H}")
    g(f"v_and_b32 {A[0]}, 7, v1")
    g(f"v_lshlrev_b32 {A[1]}, 3, {A[0]}")
    g(f"v_lshrrev_b32 {A[2]}, 3, v1")
    g(f"v_mul_u32_u24 {A[2]}, 18432, {A[2]}")
    g(f"v_lshl_add_u32 {A[2]}, {A[0]}, 4, {A[2]}")
    srd(48, 22, 4608 * 2)
    poll_tagged(lambda: g(f"buffer_load_dwordx2 v[48:49], {A[1]}, s[52:55], s71 offen sc1"),
                range(48, 50), [A[3], A[4]], sleep=4, name="t4h")
    g("s_lshl_b32 s71, s67, 1")
    g(f"s_add_u32 s71, s71, {WS_DNP}")
    G0 = 64

    def t4loads():
        for i in range(18):
            g(f"s_add_u32 s64, s71, {i*147456}")
            g(f"buffer_load_dwordx4 v[{G0+4*i}:{G0+4*i+3}], {A[2]}, s[52:55], s64 offen sc1")
    poll_tagged(t4loads, range(G0, G0 + 72), [A[3], A[4]], name="t4g")
    idx = list(range(18))
    while len(idx) > 1:
        nxt = []
        for k in range(0, len(idx) - 1, 2):
            a_, b_ = G0 + 4 * idx[k], G0 + 4 * idx[k + 1]
            pk("v_pk_add_f32", a_, a_, b_)
            pk("v_pk_add_f32", a_ + 2, a_ + 2, b_ + 2)
            nxt.append(idx[k])
        if len(idx) % 2:
            nxt.append(idx[-1])
        idx = nxt
    g("s_nop 1")
    for k in range(4):
        dpp_op("v_add_f32", f"v{G0+k}", f"v{G0+k}", "row_ror:8")
    for k in range(4):
        g(f"v_mov_b32 v{G0+4+k}, v{G0+k}")
    g("s_nop 1")
    for k in range(4):
        g(f"v_permlane16_swap_b32 v{G0+k}, v{G0+4+k}")
    g("s_nop 1")
    pk("v_pk_add_f32", G0, G0, G0 + 4)
    pk("v_pk_add_f32", G0 + 2, G0 + 2, G0 + 6)
    for k in range(4):
        g(f"v_mov_b32 v{G0+4+k}, v{G0+k}")
    g("s_nop 1")
    for k in range(4):
        g(f"v_permlane32_swap_b32 v{G0+k}, v{G0+4+k}")
    g("s_nop 1")
    pk("v_pk_add_f32", G0, G0, G0 + 4)
    pk("v_pk_add_f32", G0 + 2, G0 + 2, G0 + 6)
    g(f"v_cvt_pk_bf16_f32 v{G0+4}, v{G0}, v{G0+1}")
    g(f"v_cvt_pk_bf16_f32 v{G0+5}, v{G0+2}, v{G0+3}")
    unpack(f"v{G0}", f"v{G0+1}", f"v{G0+4}")
    unpack(f"v{G0+2}", f"v{G0+3}", f"v{G0+5}")
    unpack(f"v{G0+4}", f"v{G0+5}", "v48")
    unpack(f"v{G0+6}", f"v{G0+7}", "v49")
    pk("v_pk_add_f32", G0, G0, G0 + 4)
    pk("v_pk_add_f32", G0 + 2, G0 + 2, G0 + 6)
    g(f"v_cvt_pk_bf16_f32 v{G0+4}, v{G0}, v{G0+1}")
    g(f"v_cvt_pk_bf16_f32 v{G0+5}, v{G0+2}, v{G0+3}")
    g("s_mov_b64 exec, 0xff")
    g(f"buffer_store_dwordx2 v[{G0+4}:{G0+5}], {A[1]}, s[48:51], s67 offen")
    exec_all()
    stamp(4)
    g("s_branch L_fin")

    label("L_stream")
    VOFF = ["v5", "v6"]
    VKD = "v9"
    KADDR = [f"v{10+i}" for i in range(4)]
    VADDR = [f"v{14+i}" for i in range(16)]
    PADDR = "v30"
    KD = 32
    QV = 128
    VF = 128
    ACC = 160
    KF = 192
    PF = 192
    DG = [208, 212]
    SREG = 216
    T = [f"v{232+i}" for i in range(16)]
    TB = 232

    g(f"s_mul_i32 s65, s3, {R*4096}")
    g(f"s_add_u32 s65, s65, {RING}")
    g("s_lshl_b32 s66, s31, 4")
    g("s_add_u32 s66, s66, s30")
    g("s_lshl_b32 s66, s66, 20")
    g("s_lshl_b32 s64, s32, 19")
    g("s_add_u32 s66, s66, s64")
    g("s_lshl_b32 s64, s3, 12")
    g("s_add_u32 s66, s66, s64")
    g(f"v_lshlrev_b32 {T[0]}, 1, v7")
    g(f"v_xor_b32 {T[1]}, {T[0]}, v8")
    g(f"v_lshlrev_b32 {T[2]}, 8, v7")
    g(f"v_lshl_add_u32 {VOFF[0]}, {T[1]}, 4, {T[2]}")
    g(f"v_xor_b32 {T[1]}, 8, {T[1]}")
    g(f"v_lshl_add_u32 {VOFF[1]}, {T[1]}, 4, {T[2]}")
    g(f"v_lshlrev_b32 {T[0]}, 8, v8")
    g(f"v_lshl_add_u32 {VKD}, v7, 4, {T[0]}")
    g("s_waitcnt lgkmcnt(0)")
    srd(40, 6, 0x8000000)
    srd(44, 8, 0x8000000)
    srd(52, 26, WS_SIZE)
    if DYN:
        srd(56, 24, 256)
        g(f"s_cmp_lt_u32 s29, 18")
        g(f"s_cselect_b32 s68, {Wn+ROLEW}, {Wn}")

    def is_direct(t):
        return R <= t < R + NV

    def tile_slot(t):
        return t if t < R else (t - NV) % R

    def emit_kv_load(t, i):
        srdn = "s[40:43]" if t < 32 else "s[44:47]"
        if is_direct(t):
            if i == 0:
                g(f"s_add_u32 s67, s66, {t*16384}")
            r = KD + 16 * (t - R) + 4 * i
            g(f"buffer_load_dwordx4 v[{r}:{r+3}], {VKD}, {srdn}, s67 offen offset:{i*64} {POL_KV}")
            return
        if i == 0:
            g(f"s_add_u32 m0, s65, {tile_slot(t)*4096}")
            g(f"s_add_u32 s67, s66, {(t % 32)*16384}")
        g(f"buffer_load_dwordx4 {VOFF[i>>1]}, {srdn}, s67 offen offset:{i*1024} {POL_KV} lds")

    def post_group(G):
        d = DG[G & 1]
        g(f"v_cvt_pk_bf16_f32 {T[0]}, v{d}, v{d+1}")
        unpack(T[1], T[2], T[0])
        g(f"v_mul_f32 {T[1]}, s69, {T[1]}")
        g(f"v_mul_f32 {T[2]}, s69, {T[2]}")
        g(f"v_cvt_pk_bf16_f32 {T[0]}, {T[1]}, {T[2]}")
        unpack(f"v{SREG+2*G}", f"v{SREG+2*G+1}", T[0])

    def emit_qgate():
        lds_wait_ge(F_Q, 1, T[0])
        stamp(1)
        for t4 in range(4):
            exec_mask((0x3 << (4 * t4)) * 0x0001000100010001)
            for s in range(4):
                q = QV + 16 * t4 + 4 * s
                g(f"ds_read_b128 v[{q}:{q+3}], {T[10]} offset:{QL+64*s}")
            g("s_waitcnt lgkmcnt(0)")
        exec_all()

    def emit_k_cons(t):
        G, t4 = t >> 2, t & 3
        d = DG[G & 1]
        direct = is_direct(t)
        if not direct:
            off = tile_slot(t) * 4096
            if DYN and CKPT:
                g(f"ds_read_b32 v31, v2 offset:{F_MODE}")
            for s in range(4):
                g(f"ds_read_b128 v[{KF+4*s}:{KF+4*s+3}], {KADDR[s]} offset:{off}")
        if t4 == 0 and G > 0:
            g("s_nop 7" if direct else "s_nop 4")
            post_group(G - 1)
        for s in range(4):
            if not direct:
                g(f"s_waitcnt lgkmcnt({3-s})")
                kr = KF + 4 * s
            else:
                kr = KD + 16 * (t - R) + 4 * s
            q = QV + 16 * t4 + 4 * s
            c = "0" if (t4 == 0 and s == 0) else f"v[{d}:{d+3}]"
            g(f"v_mfma_f32_16x16x32_bf16 v[{d}:{d+3}], v[{q}:{q+3}], v[{kr}:{kr+3}], {c}")
        if DYN and CKPT and not direct:
            g("v_readfirstlane_b32 s68, v31")

    def emit_stats():
        g("s_nop 7")
        g("s_nop 3")
        post_group(7)
        for h in range(2):
            m, t = T[4 + h], T[8]
            S = [f"v{SREG+2*G+h}" for G in range(8)]
            g(f"v_max3_f32 {m}, {S[0]}, {S[1]}, {S[2]}")
            g(f"v_max3_f32 {m}, {m}, {S[3]}, {S[4]}")
            g(f"v_max3_f32 {m}, {m}, {S[5]}, {S[6]}")
            g(f"v_max_f32 {m}, {m}, {S[7]}")
            allreduce("v_max_f32", m, t)
        for h in range(2):
            m, lsum = T[4 + h], T[6 + h]
            for G in range(8):
                S = f"v{SREG+2*G+h}"
                g(f"v_sub_f32 {T[8]}, {S}, {m}")
                g(f"v_mul_f32 {T[8]}, s70, {T[8]}")
                g(f"v_exp_f32 {T[8]}, {T[8]}")
                g("s_nop 0")
                if G == 0:
                    g(f"v_mov_b32 {lsum}, {T[8]}")
                else:
                    g(f"v_add_f32 {lsum}, {lsum}, {T[8]}")
            allreduce("v_add_f32", lsum, T[8])
        g(f"v_mov_b32 {T[12]}, {T[4]}")
        g(f"v_mov_b32 {T[13]}, {T[6]}")
        g(f"v_mov_b32 {T[14]}, {T[5]}")
        g(f"v_mov_b32 {T[15]}, {T[7]}")
        g("s_lshl_b32 s64, s3, 4")
        g(f"v_mov_b32 {T[8]}, s64")
        g("s_mov_b64 exec, 1")
        g(f"ds_write_b128 {T[8]}, v[{TB+12}:{TB+15}] offset:{MLW}")
        g(f"ds_add_rtn_u32 {T[9]}, v2, v3 offset:{F_ML}")
        exec_all()
        g("s_waitcnt lgkmcnt(0)")
        g(f"v_readfirstlane_b32 s64, {T[9]}")
        g("s_cmp_eq_u32 s64, 3")
        g("s_cbranch_scc0 L_s_mlnl")
        for w in range(4):
            g(f"ds_read_b128 v[{32+4*w}:{35+4*w}], v2 offset:{MLW+16*w}")
        g("s_lshl_b32 s64, s38, 6")
        g(f"s_add_u32 s64, s64, {WS_ML}")
        g("s_waitcnt lgkmcnt(0)")
        merge(4, [32 + 4 * w for w in range(4)], 48)
        for i in range(4):
            g(f"v_min_u32 v{48+i}, -2, v{48+i}")
        g("s_mov_b64 exec, 1")
        g(f"buffer_store_dwordx4 v[48:51], v2, s[52:55], s64 offen sc1")
        g(f"ds_write_b128 v2, v[48:51] offset:{MLR}")
        g(f"ds_add_u32 v2, v3 offset:{F_MLO}")
        exec_all()
        label("L_s_mlnl")
        stamp(2)

    def merge(n, src, dst):
        for h in range(2):
            ms = [f"v{b+2*h}" for b in src]
            ls = [f"v{b+2*h+1}" for b in src]
            M = f"v{56+h}"
            g(f"v_max_f32 {M}, {ms[0]}, {ms[1]}")
            for k in range(2, n):
                g(f"v_max_f32 {M}, {M}, {ms[k]}")
            Ls = f"v{58+h}"
            for k in range(n):
                g(f"v_sub_f32 v60, {ms[k]}, {M}")
                g("v_mul_f32 v60, s70, v60")
                g("v_exp_f32 v60, v60")
                g("s_nop 0")
                if k == 0:
                    g(f"v_mul_f32 {Ls}, v60, {ls[k]}")
                else:
                    g(f"v_fmac_f32 {Ls}, v60, {ls[k]}")
        g(f"v_mov_b32 v{dst}, v56")
        g(f"v_mov_b32 v{dst+1}, v58")
        g(f"v_mov_b32 v{dst+2}, v57")
        g(f"v_mov_b32 v{dst+3}, v59")

    def emit_pgate():
        lds_wait_ge(F_GC, 1, T[0])
        g("s_lshl_b32 s64, s38, 6")
        g(f"s_add_u32 s64, s64, {WS_ML}")
        g("s_xor_b32 s64, s64, 64")
        poll_tagged(lambda: g("buffer_load_dwordx4 v[36:39], v2, s[52:55], s64 offen sc1"),
                    range(36, 40), [T[0], T[1]], sleep=1, name="ml")
        lds_wait_ge(F_MLO, 1, T[0])
        stamp(3)
        g(f"ds_read_b128 v[32:35], v2 offset:{MLR}")
        g("s_cmp_eq_u32 s32, 0")
        g("s_cselect_b64 vcc, -1, 0")
        g("s_waitcnt lgkmcnt(0)")
        for i in range(4):
            g(f"v_cndmask_b32 v{40+i}, v{36+i}, v{32+i}, vcc")
            g(f"v_cndmask_b32 v{44+i}, v{32+i}, v{36+i}, vcc")
        merge(2, [40, 44], TB + 12)
        for h in range(2):
            l_ = T[13 + 2 * h]
            g(f"v_rcp_f32 {T[0]}, {l_}")
            g("s_nop 0")
            g(f"v_fma_f32 {T[1]}, -{l_}, {T[0]}, 1.0")
            g(f"v_fma_f32 {l_}, {T[1]}, {T[0]}, {T[0]}")
        g("s_lshl_b32 s64, s3, 11")
        g(f"s_add_u32 s64, s64, {PBUF}")
        g(f"v_lshl_add_u32 {T[9]}, v1, 1, s64")
        for G in range(8):
            for h in range(2):
                S = f"v{SREG+2*G+h}"
                g(f"v_sub_f32 {T[h]}, {S}, {T[12+2*h]}")
                g(f"v_mul_f32 {T[h]}, s70, {T[h]}")
                g(f"v_exp_f32 {T[h]}, {T[h]}")
            g("s_nop 0")
            g(f"v_mul_f32 {T[0]}, {T[0]}, {T[13]}")
            g(f"v_mul_f32 {T[1]}, {T[1]}, {T[15]}")
            g(f"v_cvt_pk_bf16_f32 {T[2+(G&1)]}, {T[0]}, {T[1]}")
            g(f"ds_write_b16 {T[9]}, {T[2+(G&1)]} offset:{G*128}")
            g(f"ds_write_b16_d16_hi {T[9]}, {T[2+(G&1)]} offset:{1024+G*128}")
        g("s_waitcnt lgkmcnt(0)")

    def emit_v_cons(u):
        off = tile_slot(32 + 2 * u) * 4096
        assert tile_slot(33 + 2 * u) == tile_slot(32 + 2 * u) + 1
        if DYN and CKPT:
            g(f"ds_read_b32 v31, v2 offset:{F_MODE}")
        g(f"ds_read_b128 v[{PF}:{PF+3}], {PADDR} offset:{u*64}")
        for hb in range(2):
            for nt in range(4 * hb, 4 * hb + 4):
                r = VF + 4 * nt
                g(f"ds_read_b64_tr_b16 v[{r}:{r+1}], {VADDR[2*nt]} offset:{off}")
                g(f"ds_read_b64_tr_b16 v[{r+2}:{r+3}], {VADDR[2*nt+1]} offset:{off}")
            for k, nt in enumerate(range(4 * hb, 4 * hb + 4)):
                r = VF + 4 * nt
                a = ACC + 4 * nt
                g(f"s_waitcnt lgkmcnt({6-2*k})")
                c = "0" if u == 0 else f"v[{a}:{a+3}]"
                g(f"v_mfma_f32_16x16x32_bf16 v[{a}:{a+3}], v[{r}:{r+3}], v[{PF}:{PF+3}], {c}")
        if DYN and CKPT:
            g("v_readfirstlane_b32 s68, v31")

    def emit_setup():
        g("s_barrier")
        g(f"v_and_b32 {T[0]}, 3, v8")
        g(f"v_lshrrev_b32 {T[1]}, 3, v8")
        g(f"v_lshl_add_u32 {T[0]}, {T[1]}, 2, {T[0]}")
        g(f"v_lshlrev_b32 {T[0]}, 1, {T[0]}")
        g(f"v_lshlrev_b32 {T[2]}, 8, v8")
        g(f"v_add_u32 {T[2]}, s65, {T[2]}")
        for s in range(4):
            g(f"v_add_u32 {T[1]}, {4*s}, v7")
            g(f"v_xor_b32 {T[1]}, {T[1]}, {T[0]}")
            g(f"v_lshl_add_u32 {KADDR[s]}, {T[1]}, 4, {T[2]}")
        g(f"v_bfe_u32 {T[0]}, v1, 2, 2")
        g(f"v_and_b32 {T[1]}, 1, v7")
        g(f"v_lshl_add_u32 {T[3]}, {T[1]}, 2, {T[0]}")
        g(f"v_lshl_add_u32 {T[4]}, {T[1]}, 3, {T[0]}")
        g(f"v_lshlrev_b32 {T[4]}, 8, {T[4]}")
        g(f"v_lshrrev_b32 {T[5]}, 1, v7")
        g(f"v_lshl_add_u32 {T[4]}, {T[5]}, 12, {T[4]}")
        g(f"v_and_b32 {T[5]}, 3, v1")
        g(f"v_lshl_add_u32 {T[4]}, {T[5]}, 3, {T[4]}")
        g(f"v_add_u32 {T[4]}, s65, {T[4]}")
        for nt in range(8):
            g(f"v_xor_b32 {T[5]}, {nt}, {T[3]}")
            g(f"v_lshl_add_u32 {VADDR[2*nt]}, {T[5]}, 5, {T[4]}")
            g(f"v_add_u32 {VADDR[2*nt+1]}, 1024, {VADDR[2*nt]}")
        g("s_lshl_b32 s64, s3, 11")
        g(f"s_add_u32 s64, s64, {PBUF}")
        g(f"v_and_b32 {T[0]}, 1, v8")
        g(f"v_lshlrev_b32 {T[1]}, 10, {T[0]}")
        g(f"v_lshl_add_u32 {T[1]}, v7, 4, {T[1]}")
        g(f"v_add_u32 {PADDR}, s64, {T[1]}")
        g(f"s_mov_b32 s69, {hex(SCALE)}")
        g(f"s_mov_b32 s70, {hex(LOG2E)}")
        for i in range(64):
            g(f"v_mov_b32 v{QV+i}, 0")
        g(f"v_lshlrev_b32 {T[0]}, 8, {T[0]}")
        g(f"v_lshl_add_u32 {T[10]}, v7, 4, {T[0]}")

    loads = []
    for t in range(64):
        for i in range(4):
            sl = set() if is_direct(t) else {tile_slot(t) * 4 + i}
            loads.append((lambda t=t, i=i: emit_kv_load(t, i), sl))
    cons = [dict(need=-1, gate="q", frees=set(), emit=emit_qgate)]
    for t in range(32):
        fr = set() if is_direct(t) else {tile_slot(t) * 4 + i for i in range(4)}
        cons.append(dict(need=4 * t + 3, gate=None, frees=fr, emit=(lambda t=t: emit_k_cons(t))))
    cons.append(dict(need=127, gate=None, frees=set(), emit=emit_stats))
    cons.append(dict(need=127, gate="ml", frees=set(), emit=emit_pgate))
    for u in range(16):
        t = 32 + 2 * u
        cons.append(dict(need=4 * t + 7, gate=None,
                         frees={tile_slot(t) * 4 + i for i in range(4)} | {tile_slot(t + 1) * 4 + i for i in range(4)},
                         emit=(lambda u=u: emit_v_cons(u))))

    landed = -1
    ci = 0
    issued = 0

    def do_cons(c):
        nonlocal landed
        if c["need"] > landed:
            g(f"s_waitcnt vmcnt({issued - 1 - c['need']})")
            landed = c["need"]
        c["emit"]()

    for n in range(len(loads)):
        if n == W0:
            emit_setup()
        slots = loads[n][1]
        last = -1
        for k in range(ci, len(cons)):
            if cons[k]["frees"] & slots and cons[k]["need"] < n:
                last = k
        while ci <= last:
            do_cons(cons[ci])
            ci += 1
        w = W0 if n < 4 * (R + NV) else Wn
        if Wend and n >= 4 * Tend:
            w = Wend
        if DYN and n >= 8 and (CKPT or n < 4 * TROLE):
            wmin, wmax = DYN
            if n - wmax > landed:
                g(f"s_waitcnt vmcnt({wmax-1})")
                landed = n - wmax
            go = nl("go")
            for ww in range(wmax - 1, wmin - 1, -1):
                if n - ww > landed:
                    g(f"s_cmp_gt_u32 s68, {ww}")
                    g(f"s_cbranch_scc1 {go}")
                    g(f"s_waitcnt vmcnt({ww-1})")
            label(go)
            if n % 4 == 0 and (n // 4) in CKPT:
                ck = CKPT.index(n // 4)
                sk = nl("ck")
                g("s_cmp_eq_u32 s3, 0")
                g(f"s_cbranch_scc0 {sk}")
                g("v_mov_b32 v4, 1")
                g("s_mov_b64 exec, 1")
                g(f"buffer_atomic_add v4, v2, s[56:59], 0 offen offset:{64+4*ck} sc0")
                exec_all()
                label(sk)
            if n % 4 == 0 and (n // 4 - 3) in CKPT:
                sk = nl("ck")
                g("s_cmp_eq_u32 s3, 0")
                g(f"s_cbranch_scc0 {sk}")
                g("v_readfirstlane_b32 s64, v4")
                g(f"s_mov_b32 s71, {THR[-1][1]}")
                for (lim, wv) in reversed(THR[:-1]):
                    g(f"s_cmp_lt_u32 s64, {lim}")
                    g(f"s_cselect_b32 s71, {wv}, s71")
                g("v_mov_b32 v4, s71")
                g(f"ds_write_b32 v2, v4 offset:{F_MODE}")
                label(sk)
        elif n - w > landed:
            g(f"s_waitcnt vmcnt({w-1})")
            landed = n - w
        loads[n][0]()
        issued = n + 1
        k = 0
        while ci < len(cons) and k < maxper and cons[ci]["need"] <= landed and not cons[ci]["gate"]:
            do_cons(cons[ci])
            ci += 1
            k += 1
    while ci < len(cons):
        do_cons(cons[ci])
        ci += 1
    stamp(4)

    g("s_lshl_b32 s64, s3, 10")
    g(f"v_lshlrev_b32 {T[0]}, 9, v8")
    g(f"v_lshl_add_u32 {T[0]}, v7, 4, {T[0]}")
    g(f"v_add_u32 {T[0]}, s64, {T[0]}")
    g(f"v_lshlrev_b32 {T[2]}, 4, v1")
    g("s_lshl_b32 s64, s38, 10")
    g(f"s_add_u32 s64, s64, {WS_OP}")
    exec_mask(0x0003000300030003)
    for nt in range(8):
        a = ACC + 4 * nt
        if nt == 6:
            g("s_nop 3")
        g(f"ds_write_b128 {T[0]}, v[{a}:{a+3}] offset:{RED+64*nt}")
    g("s_mov_b64 exec, 1")
    g(f"ds_add_rtn_u32 {T[1]}, v2, v3 offset:{F_RED}")
    exec_all()
    g("s_waitcnt lgkmcnt(0)")
    g(f"v_readfirstlane_b32 s67, {T[1]}")
    g("s_cmp_eq_u32 s67, 3")
    g("s_cbranch_scc0 L_s_notlast")
    for w in range(4):
        g(f"ds_read_b128 v[{32+4*w}:{35+4*w}], {T[2]} offset:{RED+1024*w}")
    g("s_waitcnt lgkmcnt(2)")
    pk("v_pk_add_f32", 32, 32, 36)
    pk("v_pk_add_f32", 34, 34, 38)
    g("s_waitcnt lgkmcnt(0)")
    pk("v_pk_add_f32", 40, 40, 44)
    pk("v_pk_add_f32", 42, 42, 46)
    pk("v_pk_add_f32", 32, 32, 40)
    pk("v_pk_add_f32", 34, 34, 42)
    for i in range(4):
        g(f"v_min_u32 v{32+i}, -2, v{32+i}")
    g(f"buffer_store_dwordx4 v[32:35], {T[2]}, s[52:55], s64 offen sc1")
    label("L_s_notlast")
    stamp(5)

    label("L_fin")
    if TS:
        g("s_waitcnt lgkmcnt(0)")
        g("s_lshl_b32 s64, s2, 3")
        g("s_add_u32 s64, s64, s3")
        g("s_lshl_b32 s64, s64, 7")
        g(f"s_add_u32 s64, s64, {WS_TS}")
        g("s_mov_b64 exec, 1")
        for i in range(10):
            g(f"v_mov_b32 v32, s{72+2*i}")
            g(f"v_mov_b32 v33, s{73+2*i}")
            g(f"buffer_store_dwordx2 v[32:33], v2, s[52:55], s64 offen offset:{8*i}")
            g("s_nop 1")
    label("L_end")
    g("s_endpgm")
    L.append('.section .rodata,"a"')
    L.append(".p2align 6")
    L.append(f".amdhsa_kernel {KN}")
    L.append("  .amdhsa_next_free_vgpr 256")
    L.append("  .amdhsa_next_free_sgpr 100")
    L.append("  .amdhsa_accum_offset 256")
    L.append("  .amdhsa_group_segment_fixed_size 0")
    L.append("  .amdhsa_kernarg_size 96")
    L.append("  .amdhsa_user_sgpr_count 2")
    L.append("  .amdhsa_user_sgpr_kernarg_segment_ptr 1")
    L.append("  .amdhsa_system_sgpr_workgroup_id_x 1")
    L.append("  .amdhsa_float_denorm_mode_32 3")
    L.append("  .amdhsa_float_denorm_mode_16_64 3")
    L.append(".end_amdhsa_kernel")
    return "\n".join(L) + "\n"


if __name__ == "__main__":
    kw = eval("dict(" + (sys.argv[1] if len(sys.argv) > 1 else "") + ")")
    sys.stdout.write(gen(**kw))
```

```python
import sys

KN = "sequential_preLN__gqa_block_cached__geglu_ffn__decode_kernel"

WS_ML = 0x10000
WS_OP = 0x20000
WS_AOP = 0x60000
WS_H = 0xB0000
WS_DNP = 0x100000
WS_Q = 0x400000
WS_FQ = 0x480000
WS_FI = 0x490000
WS_TS = 0x500000
WS_SIZE = 0x20000000

LOG2E = 0x3FB8AA3B
SCALE = 0x3DB504F3
INV576 = 0x3AE38E39
EPS = 0x3727C5AC


def gen(R=6, Wn=5, NV=6, POL_KV="nt", POL_W="nt", TS=False, maxper=1, AW=4, TSQ=False, QSLEEP=0, W0=None, Wend=None, Tend=48, DYN=None, CKPT=(12, 22, 32, 44, 54), THR=((64, 4), (160, 5), (224, 6), (999, 7)), ROLEW=0, TROLE=32, DBGT=False):
    L = []
    lab = [0]
    if W0 is None:
        W0 = Wn

    def g(s):
        L.append("  " + s)

    def label(n):
        L.append(n + ":")

    def nl(p):
        lab[0] += 1
        return f"L_{p}_{lab[0]}"

    F_XN, F_INIT, F_Q, F_ML, F_MLO, F_RED, F_S0, F_S1, F_S2, F_S3, F_QS, F_GC, F_MODE = [4 * i for i in range(13)]
    NLDS = 336
    MLW = 256
    MLR = 320
    QL = 512
    GU = 1024
    RED = 2048
    OB = 6144
    OBS = 528
    XN = 10368
    XNS = 1168
    PBUF = 19712
    STG = 27904
    RING = 64768
    LDS_TOTAL = RING + 4 * R * 4096
    assert LDS_TOTAL <= 163840, LDS_TOTAL
    assert R % 2 == 0 and NV % 2 == 0 and NV <= 6

    TMO_LDS = 4000000
    TMO_G = 400000

    L.append(f"; @launch grid=(256,1,1) block=(512,1,1) lds={LDS_TOTAL}")
    L.append('.amdgcn_target "amdgcn-amd-amdhsa--gfx950"')
    L.append(".text")
    L.append(f".globl {KN}")
    L.append(".p2align 8")
    L.append(f".type {KN},@function")
    label(KN)

    def srd(base, plo, size):
        g(f"s_mov_b32 s{base}, s{plo}")
        g(f"s_and_b32 s{base+1}, s{plo+1}, 0xffff")
        g(f"s_mov_b32 s{base+2}, {hex(size)}")
        g(f"s_mov_b32 s{base+3}, 0x20000")

    def stampq(idx):
        if TS and TSQ:
            g(f"s_memrealtime s[{72+2*idx}:{73+2*idx}]")

    def stamp(idx, aux=False):
        if TS and not (TSQ and aux and idx >= 5):
            g(f"s_memrealtime s[{72+2*idx}:{73+2*idx}]")

    def spin_tail(lp, sleep=0):
        if sleep:
            g(f"s_sleep {sleep}")
        g("s_sub_u32 s94, s94, 1")
        g("s_cmp_lg_u32 s94, 0")
        g(f"s_cbranch_scc1 {lp}")
        g("s_branch L_end")

    def lds_wait_ge(off, val, vt, sleep=1):
        l = nl("lw")
        d = nl("lwd")
        g(f"s_mov_b32 s94, {TMO_LDS}")
        label(l)
        g(f"ds_read_b32 {vt}, v2 offset:{off}")
        g("s_waitcnt lgkmcnt(0)")
        g(f"v_readfirstlane_b32 s95, {vt}")
        g(f"s_cmp_ge_u32 s95, {val}")
        g(f"s_cbranch_scc1 {d}")
        spin_tail(l, sleep)
        label(d)

    def lds_signal(off):
        g("s_mov_b64 exec, 1")
        g(f"ds_add_u32 v2, v3 offset:{off}")
        g("s_mov_b64 exec, -1")

    def exec_mask(m):
        g(f"s_mov_b32 exec_lo, {hex(m & 0xFFFFFFFF)}")
        g(f"s_mov_b32 exec_hi, {hex(m >> 32)}")

    def exec_all():
        g("s_mov_b64 exec, -1")

    def unpack(lo, hi, src):
        g(f"v_lshlrev_b32 {lo}, 16, {src}")
        g(f"v_and_b32 {hi}, 0xffff0000, {src}")

    def dpp_op(op, dst, src, ctrl):
        g(f"{op}_dpp {dst}, {src}, {src} {ctrl} row_mask:0xf bank_mask:0xf")

    def allreduce(op, v, t, full=True):
        for ctrl in ("quad_perm:[1,0,3,2]", "quad_perm:[2,3,0,1]", "row_half_mirror", "row_mirror"):
            g("s_nop 1")
            dpp_op(op, v, v, ctrl)
        g(f"v_mov_b32 {t}, {v}")
        g("s_nop 1")
        g(f"v_permlane16_swap_b32 {v}, {t}")
        g("s_nop 1")
        g(f"{op} {v}, {v}, {t}")
        if full:
            g(f"v_mov_b32 {t}, {v}")
            g("s_nop 1")
            g(f"v_permlane32_swap_b32 {v}, {t}")
            g("s_nop 1")
            g(f"{op} {v}, {v}, {t}")

    def poll_tagged(loads_fn, regs, tmp, sleep=0, name="pt"):
        lp = nl(name)
        dn = nl(name + "d")
        g(f"s_mov_b32 s94, {TMO_G}")
        label(lp)
        loads_fn()
        g("s_waitcnt vmcnt(0)")
        rs = list(regs)
        if len(rs) == 1:
            g(f"v_cmp_eq_u32 vcc, -1, v{rs[0]}")
        else:
            h = (len(rs) + 1) // 2
            chains = [rs[:h], rs[h:]] if len(rs) >= 6 else [rs]
            tt = [tmp[0], tmp[1]]
            seqs = []
            for ci, ch in enumerate(chains):
                sq = []
                t = tt[ci]
                if len(ch) >= 3:
                    sq.append(f"v_max3_u32 {t}, v{ch[0]}, v{ch[1]}, v{ch[2]}")
                    rest = ch[3:]
                else:
                    sq.append(f"v_max_u32 {t}, v{ch[0]}, v{ch[1]}")
                    rest = ch[2:]
                while len(rest) >= 2:
                    sq.append(f"v_max3_u32 {t}, {t}, v{rest[0]}, v{rest[1]}")
                    rest = rest[2:]
                if rest:
                    sq.append(f"v_max_u32 {t}, {t}, v{rest[0]}")
                seqs.append(sq)
            for i in range(max(len(s_) for s_ in seqs)):
                for s_ in seqs:
                    if i < len(s_):
                        g(s_[i])
            if len(chains) == 2:
                g(f"v_max_u32 {tt[0]}, {tt[0]}, {tt[1]}")
            g(f"v_cmp_eq_u32 vcc, -1, {tt[0]}")
        g("s_cmp_eq_u64 vcc, 0")
        g(f"s_cbranch_scc1 {dn}")
        spin_tail(lp, sleep)
        label(dn)

    g("s_cmp_ge_u32 s2, 256")
    g("s_cbranch_scc1 L_end")
    g("s_load_dwordx16 s[4:19], s[0:1], 0")
    g("s_load_dwordx8 s[20:27], s[0:1], 64")
    if TS:
        for i in range(72, 92):
            g(f"s_mov_b32 s{i}, 0")
    stamp(0)
    g("v_and_b32 v1, 63, v0")
    g("v_lshrrev_b32 v4, 6, v0")
    g("v_mov_b32 v2, 0")
    g("v_mov_b32 v3, 1")
    g("v_readfirstlane_b32 s3, v4")
    g("v_lshrrev_b32 v7, 4, v1")
    g("v_and_b32 v8, 15, v1")
    g("s_and_b32 s28, s2, 7")
    g("s_lshr_b32 s29, s2, 3")
    g("s_lshr_b32 s64, s29, 4")
    g("s_lshl_b32 s30, s28, 1")
    g("s_add_u32 s30, s30, s64")
    g("s_and_b32 s33, s29, 15")
    g("s_lshr_b32 s31, s33, 1")
    g("s_and_b32 s32, s33, 1")
    g("s_lshl_b32 s38, s30, 4")
    g("s_add_u32 s38, s38, s33")
    g("s_mul_i32 s34, s28, 18")
    g("s_add_u32 s34, s34, s29")
    g("s_cmp_lt_u32 s3, 4")
    g("s_cbranch_scc1 L_stream")

    RAW = 10
    UN = 20
    A = [f"v{40+i}" for i in range(24)]
    WO = 64
    WD = 96
    WG = 132
    PB = 204
    QB = 132
    NONCE = 254
    g("s_sub_u32 s39, s3, 4")
    g(f"v_lshrrev_b32 {A[0]}, 5, v1")
    g(f"v_mul_u32_u24 {A[2]}, 1152, {A[0]}")
    g(f"v_and_b32 {A[1]}, 31, v1")
    g(f"v_lshl_add_u32 v9, {A[1]}, 2, {A[2]}")
    g("s_mul_i32 s64, s39, 2304")
    g("s_waitcnt lgkmcnt(0)")
    srd(60, 4, 8 * 576 * 2)
    for i in range(9):
        g(f"buffer_load_dword v{RAW+i}, v9, s[60:63], s64 offen offset:{128*i}")
    srd(52, 26, WS_SIZE)
    srd(56, 24, 256)
    g("s_cmp_eq_u32 s39, 0")
    g("s_cbranch_scc0 L_a_not0")
    if DBGT:
        g("s_memrealtime s[96:97]")
    srd(48, 10, 576 * 4096 * 2)
    g(f"v_lshrrev_b32 {A[3]}, 3, v1")
    g(f"v_lshlrev_b32 {A[3]}, 13, {A[3]}")
    g(f"v_and_b32 {A[4]}, 7, v1")
    g(f"v_lshl_add_u32 {A[2]}, {A[4]}, 4, {A[3]}")
    g("s_and_b32 s35, s33, 3")
    g("s_lshr_b32 s36, s33, 2")
    g("s_mul_i32 s37, s35, 5")
    g("s_cmp_eq_u32 s35, 3")
    g("s_cselect_b32 s37, 14, s37")
    g("s_lshl_b32 s68, s37, 18")
    g("s_lshl_b32 s64, s30, 9")
    g("s_add_u32 s68, s68, s64")
    g("s_lshl_b32 s64, s36, 7")
    g("s_add_u32 s68, s68, s64")
    for i in range(20):
        if i == 16:
            g("s_cmp_ge_u32 s35, 2")
            g("s_cbranch_scc1 L_a0_wqd")
        g(f"s_mov_b32 m0, {STG+1024*i}")
        g(f"s_add_u32 s67, s68, {i*8*8192}")
        g(f"buffer_load_dwordx4 {A[2]}, s[48:51], s67 offen {POL_W} lds")
    label("L_a0_wqd")
    g("s_cmp_eq_u32 s2, 0")
    g("s_cbranch_scc0 L_a0_nn")
    g("s_memrealtime s[92:93]")
    g("s_waitcnt lgkmcnt(0)")
    g("s_or_b32 s92, s92, 1")
    g(f"v_mov_b32 {A[4]}, s92")
    g(f"v_mov_b32 {A[5]}, s93")
    g("s_mov_b64 exec, 1")
    g(f"buffer_store_dwordx2 v[44:45], v2, s[56:59], 0 offen sc1")
    exec_all()
    label("L_a0_nn")
    g(f"v_lshlrev_b32 {A[3]}, 2, v1")
    g(f"ds_write_b32 {A[3]}, v2")
    if DYN:
        g(f"s_cmp_lt_u32 s29, 18")
        g(f"s_cselect_b32 s64, {Wn+ROLEW}, {Wn}")
        g(f"v_mov_b32 {A[3]}, s64")
        g(f"ds_write_b32 v2, {A[3]} offset:{F_MODE}")
    g("s_waitcnt lgkmcnt(0)")
    label("L_a_not0")
    g("s_barrier")
    g(f"v_mul_u32_u24 {A[0]}, {XNS}, {A[0]}")
    g(f"v_lshl_add_u32 {A[0]}, {A[1]}, 2, {A[0]}")
    g(f"s_mul_i32 s64, s39, {2*XNS}")
    g(f"v_add_u32 v6, s64, {A[0]}")
    g(f"v_bfe_u32 {A[0]}, v1, 2, 2")
    g(f"v_lshl_add_u32 v5, v7, 3, {A[0]}")
    g(f"v_and_b32 {A[1]}, 3, v1")
    g(f"v_lshlrev_b32 v38, 3, {A[1]}")
    g(f"v_and_b32 {A[0]}, 7, v8")
    g(f"v_mul_u32_u24 {A[0]}, {XNS}, {A[0]}")
    g(f"v_lshl_add_u32 v4, v7, 4, {A[0]}")
    g("s_cmp_eq_u32 s39, 0")
    g("s_cbranch_scc1 L_a0_xw")
    g("s_waitcnt vmcnt(0)")
    label("L_a0_xw")
    g("s_waitcnt vmcnt(16)")
    stampq(5)

    def pk(op, d, a, b, c=None, mods=""):
        if c is None:
            g(f"{op} v[{d}:{d+1}], v[{a}:{a+1}], v[{b}:{b+1}] {mods}".rstrip())
        else:
            g(f"{op} v[{d}:{d+1}], v[{a}:{a+1}], v[{b}:{b+1}], v[{c}:{c+1}] {mods}".rstrip())

    def ln_body():
        for i in range(9):
            unpack(f"v{UN+2*i}", f"v{UN+2*i+1}", f"v{RAW+i}")
        pk("v_pk_add_f32", 40, UN + 0, UN + 2)
        pk("v_pk_add_f32", 42, UN + 4, UN + 6)
        pk("v_pk_add_f32", 44, UN + 8, UN + 10)
        pk("v_pk_add_f32", 46, UN + 12, UN + 14)
        pk("v_pk_add_f32", 40, 40, UN + 16)
        pk("v_pk_add_f32", 42, 42, 44)
        pk("v_pk_add_f32", 40, 40, 46)
        pk("v_pk_add_f32", 40, 40, 42)
        g("v_add_f32 v40, v40, v41")
        allreduce("v_add_f32", "v40", "v41", full=False)
        g(f"v_mul_f32 v40, {hex(INV576)}, v40")
        g("v_mov_b32 v41, v40")
        for i in range(9):
            d = 44 + 2 * (i % 3)
            acc = 50 + 2 * (i % 3)
            pk("v_pk_add_f32", d, UN + 2 * i, 40, mods="neg_lo:[0,1] neg_hi:[0,1]")
            if i < 3:
                pk("v_pk_mul_f32", acc, d, d)
            else:
                pk("v_pk_fma_f32", acc, d, d, acc)
        pk("v_pk_add_f32", 50, 50, 52)
        pk("v_pk_add_f32", 50, 50, 54)
        g("v_add_f32 v42, v50, v51")
        allreduce("v_add_f32", "v42", "v43", full=False)
        g(f"v_mul_f32 v42, {hex(INV576)}, v42")
        g("v_cvt_pk_bf16_f32 v43, v40, v42")
        unpack("v44", "v46", "v43")
        g("v_mov_b32 v45, v44")
        g(f"v_add_f32 v46, {hex(EPS)}, v46")
        g("v_cvt_pk_bf16_f32 v46, v46, v46")
        g("v_lshlrev_b32 v46, 16, v46")
        g("v_sqrt_f32 v46, v46")
        for i in range(9):
            pk("v_pk_add_f32", UN + 2 * i, UN + 2 * i, 44, mods="neg_lo:[0,1] neg_hi:[0,1]")
        g("v_cvt_pk_bf16_f32 v46, v46, v46")
        g("v_lshlrev_b32 v46, 16, v46")
        g("v_rcp_f32 v46, v46")
        for i in range(9):
            g(f"v_cvt_pk_bf16_f32 v{RAW+i}, v{UN+2*i}, v{UN+2*i+1}")
        g("v_mov_b32 v47, v46")
        for i in range(9):
            unpack(f"v{UN+2*i}", f"v{UN+2*i+1}", f"v{RAW+i}")
        for i in range(9):
            pk("v_pk_mul_f32", UN + 2 * i, UN + 2 * i, 46)
        for i in range(9):
            g(f"v_cvt_pk_bf16_f32 v{RAW+i}, v{UN+2*i}, v{UN+2*i+1}")
            g(f"ds_write_b32 v6, v{RAW+i} offset:{XN+128*i}")

    ln_body()
    lds_signal(F_XN)
    g("s_cmp_eq_u32 s39, 0")
    g("s_cbranch_scc0 L_a_init")

    g(f"buffer_load_dwordx2 v[{NONCE}:{NONCE+1}], v2, s[56:59], 0 offen sc1")
    g(f"v_lshl_add_u32 {A[3]}, v5, 7, v38")
    g("s_lshl_b32 s64, s37, 6")
    g(f"v_add_u32 {A[4]}, s64, v4")
    lds_wait_ge(F_XN, 4, A[0], sleep=0)
    stampq(6)
    g("s_waitcnt vmcnt(1)")
    stampq(7)
    QD = QB + 48
    for ksl in range(5):
        if ksl == 4:
            g("s_cmp_ge_u32 s35, 2")
            g("s_cbranch_scc1 L_a0_qdone")
        rb = QB + 24 * (ksl & 1)
        g(f"ds_read_b128 v[{rb+16}:{rb+19}], {A[4]} offset:{XN+64*ksl}")
        for nt in range(4):
            r = rb + 4 * nt
            o = STG + 4096 * ksl + 32 * nt
            g(f"ds_read_b64_tr_b16 v[{r}:{r+1}], {A[3]} offset:{o}")
            g(f"ds_read_b64_tr_b16 v[{r+2}:{r+3}], {A[3]} offset:{o+512}")
        for nt in range(4):
            r = rb + 4 * nt
            d = QD + 4 * nt
            g(f"s_waitcnt lgkmcnt({6-2*nt})")
            c = "0" if ksl == 0 else f"v[{d}:{d+3}]"
            g(f"v_mfma_f32_16x16x32_bf16 v[{d}:{d+3}], v[{r}:{r+3}], v[{rb+16}:{rb+19}], {c}")
    label("L_a0_qdone")
    g(f"v_lshlrev_b32 {A[2]}, 14, v8")
    g(f"v_lshl_add_u32 {A[2]}, v7, 4, {A[2]}")
    g("s_lshl_b32 s64, s35, 17")
    g("s_lshl_b32 s67, s30, 10")
    g("s_add_u32 s64, s64, s67")
    g("s_lshl_b32 s67, s36, 8")
    g("s_add_u32 s64, s64, s67")
    g(f"s_add_u32 s64, s64, {WS_Q}")
    g("s_nop 3")
    exec_mask(0x00FF00FF00FF00FF)
    stampq(8)
    for nt in range(4):
        d = QD + 4 * nt
        g(f"buffer_store_dwordx4 v[{d}:{d+3}], {A[2]}, s[52:55], s64 offen offset:{64*nt} sc1")
    exec_all()
    lp = nl("nz")
    dn = nl("nzd")
    g(f"s_mov_b32 s94, {TMO_G}")
    label(lp)
    g("s_waitcnt vmcnt(0)")
    g(f"v_readfirstlane_b32 s92, v{NONCE}")
    g(f"v_readfirstlane_b32 s93, v{NONCE+1}")
    g("s_cmp_lg_u32 s92, 0")
    g(f"s_cbranch_scc1 {dn}")
    g("s_sleep 4")
    g(f"buffer_load_dwordx2 v[{NONCE}:{NONCE+1}], v2, s[56:59], 0 offen sc1")
    spin_tail(lp)
    label(dn)
    g("s_lshl_b32 s64, s38, 7")
    g(f"s_add_u32 s64, s64, {WS_FQ}")
    g("s_mov_b64 exec, 1")
    g(f"buffer_store_dwordx2 v[{NONCE}:{NONCE+1}], v2, s[52:55], s64 offen sc1")
    g(f"ds_write_b64 v2, v[{NONCE}:{NONCE+1}] offset:{NLDS}")
    g(f"ds_add_u32 v2, v3 offset:{F_QS}")
    stamp(1)
    g("s_mov_b64 exec, 0xffff")
    g(f"v_lshlrev_b32 {A[2]}, 7, v1")
    g("s_lshl_b32 s64, s30, 11")
    g(f"s_add_u32 s64, s64, {WS_FQ}")
    lp = nl("qf")
    dn = nl("qfd")
    g(f"s_mov_b32 s94, {TMO_G}")
    label(lp)
    g(f"buffer_load_dwordx2 v[44:45], {A[2]}, s[52:55], s64 offen sc1")
    g("s_waitcnt vmcnt(0)")
    g("v_xor_b32 v44, s92, v44")
    g("v_xor_b32 v45, s93, v45")
    g("v_or_b32 v44, v44, v45")
    g("v_cmp_ne_u32 vcc, 0, v44")
    g("s_cmp_eq_u64 vcc, 0")
    g(f"s_cbranch_scc1 {dn}")
    spin_tail(lp, QSLEEP)
    label(dn)
    stampq(9)
    exec_all()
    g(f"v_lshlrev_b32 {A[2]}, 4, v1")
    g("s_lshl_b32 s64, s31, 14")
    g("s_lshl_b32 s67, s30, 10")
    g("s_add_u32 s64, s64, s67")
    g(f"s_add_u32 s64, s64, {WS_Q}")
    for kp in range(4):
        g(f"s_add_u32 s67, s64, {kp*131072}")
        g(f"buffer_load_dwordx4 v[{QB+4*kp}:{QB+4*kp+3}], {A[2]}, s[52:55], s67 offen sc1")
    g(f"v_lshlrev_b32 {A[3]}, 3, v1")
    g("s_waitcnt vmcnt(0)")
    for i in range(4):
        g(f"v_add_f32 v{QB+i}, v{QB+i}, v{QB+4+i}")
        g(f"v_add_f32 v{QB+8+i}, v{QB+8+i}, v{QB+12+i}")
    for i in range(4):
        g(f"v_add_f32 v{QB+i}, v{QB+i}, v{QB+8+i}")
    g(f"v_cvt_pk_bf16_f32 v{QB}, v{QB}, v{QB+1}")
    g(f"v_cvt_pk_bf16_f32 v{QB+1}, v{QB+2}, v{QB+3}")
    g(f"ds_write_b64 {A[3]}, v[{QB}:{QB+1}] offset:{QL}")
    lds_signal(F_Q)
    stamp(2)
    g("s_branch L_a_pref")

    label("L_a_init")
    lds_wait_ge(F_QS, 1, A[0], sleep=2)
    for i in range(4):
        g(f"v_mov_b32 v{PB+i}, -1")
    g(f"v_lshlrev_b32 {A[0]}, 4, v1")
    g("s_cmp_eq_u32 s39, 1")
    g("s_cbranch_scc0 L_a_23")
    g("s_lshl_b32 s64, s38, 10")
    g(f"s_add_u32 s64, s64, {WS_OP}")
    g(f"buffer_store_dwordx4 v[{PB}:{PB+3}], {A[0]}, s[52:55], s64 offen sc1")
    g("s_lshl_b32 s64, s38, 6")
    g(f"s_add_u32 s64, s64, {WS_ML}")
    g("s_mov_b64 exec, 1")
    g(f"buffer_store_dwordx4 v[{PB}:{PB+3}], {A[0]}, s[52:55], s64 offen sc1")
    exec_all()
    g("s_cmp_lt_u32 s33, 9")
    g("s_cbranch_scc0 L_a1_noo")
    g(f"v_mul_u32_u24 {A[1]}, 2304, v7")
    g(f"v_lshl_add_u32 {A[1]}, v8, 4, {A[1]}")
    g("s_mul_i32 s64, s30, 18432")
    g("s_lshl_b32 s67, s33, 8")
    g("s_add_u32 s64, s64, s67")
    g(f"s_add_u32 s64, s64, {WS_AOP}")
    g(f"buffer_store_dwordx4 v[{PB}:{PB+3}], {A[1]}, s[52:55], s64 offen sc1")
    g(f"s_add_u32 s64, s64, {4*2304}")
    g(f"buffer_store_dwordx4 v[{PB}:{PB+3}], {A[1]}, s[52:55], s64 offen sc1")
    label("L_a1_noo")
    g("s_cmp_ge_u32 s29, 23")
    g("s_cbranch_scc0 L_a_iw")
    g("s_sub_u32 s64, s29, 23")
    g("s_lshl_b32 s64, s64, 7")
    g("s_mul_i32 s67, s28, 1152")
    g("s_add_u32 s64, s64, s67")
    g(f"s_add_u32 s64, s64, {WS_H}")
    g("s_mov_b64 exec, 0xff")
    g(f"buffer_store_dwordx4 v[{PB}:{PB+3}], {A[0]}, s[52:55], s64 offen sc1")
    exec_all()
    g("s_branch L_a_iw")
    label("L_a_23")
    g("s_cmp_lt_u32 s29, 18")
    g("s_cbranch_scc0 L_a_iw")
    g("s_mul_i32 s64, s34, 18432")
    g("s_sub_u32 s67, s39, 2")
    g("s_mul_i32 s67, s67, 9216")
    g("s_add_u32 s64, s64, s67")
    g(f"s_add_u32 s64, s64, {WS_DNP}")
    for i in range(9):
        if i in (4, 8):
            g("s_add_u32 s64, s64, 4096")
        g(f"buffer_store_dwordx4 v[{PB}:{PB+3}], {A[0]}, s[52:55], s64 offen offset:{(i%4)*1024} sc1")
    label("L_a_iw")
    g("s_waitcnt vmcnt(0)")
    lds_signal(F_INIT)
    g("s_cmp_eq_u32 s39, 1")
    g("s_cbranch_scc0 L_a_iw2")
    g(f"ds_read_b64 v[{NONCE}:{NONCE+1}], v2 offset:{NLDS}")
    lds_wait_ge(F_INIT, 3, A[0], sleep=1)
    g(f"v_readfirstlane_b32 s92, v{NONCE}")
    g(f"v_readfirstlane_b32 s93, v{NONCE+1}")
    g("s_lshl_b32 s64, s38, 3")
    g(f"s_add_u32 s64, s64, {WS_FI}")
    g("s_mov_b64 exec, 1")
    g(f"buffer_store_dwordx2 v[{NONCE}:{NONCE+1}], v2, s[52:55], s64 offen sc1")
    exec_all()
    label("L_a_iw2")
    lds_wait_ge(F_Q, 1, A[0], sleep=4)

    label("L_a_pref")
    if DBGT:
        g("s_cmp_eq_u32 s39, 0")
        g("s_cbranch_scc0 L_dbgt1")
        g("s_not_b32 s96, s96")
        g("v_mov_b32 v40, s96")
        g("s_mov_b64 exec, 1")
        g("buffer_atomic_umax v40, v2, s[56:59], 0 offen offset:16")
        exec_all()
        label("L_dbgt1")

    def paced_dma(n, voff, m0fn, sofffn):
        for i in range(n):
            if i >= AW:
                g(f"s_waitcnt vmcnt({AW-1})")
            m0fn(i)
            sofffn(i)
            g(f"buffer_load_dwordx4 {voff}, s[48:51], s67 offen {POL_W} lds")
        g("s_waitcnt vmcnt(0)")

    g("s_cmp_lt_u32 s29, 18")
    g("s_cbranch_scc0 L_a_nogu")
    g("s_and_b32 s64, s39, 1")
    g("s_cmp_eq_u32 s64, 0")
    g("s_cselect_b32 s48, s16, s18")
    g("s_cselect_b32 s49, s17, s19")
    g("s_and_b32 s49, s49, 0xffff")
    g(f"s_mov_b32 s50, {hex(576*4608*2)}")
    g("s_mov_b32 s51, 0x20000")
    g("s_lshl_b32 s68, s34, 6")
    g("s_lshr_b32 s64, s39, 1")
    g(f"s_mul_i32 s64, s64, {288*9216}")
    g("s_add_u32 s68, s68, s64")
    g(f"v_lshrrev_b32 {A[0]}, 2, v1")
    g(f"v_mul_u32_u24 {A[0]}, 9216, {A[0]}")
    g(f"v_and_b32 {A[1]}, 3, v1")
    g(f"v_lshl_add_u32 {A[10]}, {A[1]}, 4, {A[0]}")
    g("s_mul_i32 s65, s39, 9216")
    g(f"s_add_u32 s65, s65, {STG}")
    g(f"v_lshl_add_u32 {A[3]}, v5, 6, v38")
    g(f"v_add_u32 {A[3]}, s65, {A[3]}")
    for (k0, k1) in ((0, 4), (4, 8), (8, 9)):
        n = 2 * (k1 - k0)
        paced_dma(n, A[10], lambda i: g(f"s_add_u32 m0, s65, {1024*i}"),
                  lambda i, k0=k0: g(f"s_add_u32 s67, s68, {(2*k0+i)*16*9216}"))
        for ks in range(k0, k1):
            for ct in range(2):
                r = WG + 4 * (2 * ks + ct)
                o = (ks - k0) * 2048 + 32 * ct
                g(f"ds_read_b64_tr_b16 v[{r}:{r+1}], {A[3]} offset:{o}")
                g(f"ds_read_b64_tr_b16 v[{r+2}:{r+3}], {A[3]} offset:{o+256}")
            if (ks - k0) % 2 == 1:
                g("s_waitcnt lgkmcnt(0)")
        g("s_waitcnt lgkmcnt(0)")
    lds_signal(F_S0)
    lds_wait_ge(F_S0, 4, A[0], sleep=2)
    label("L_a_nogu")
    g("s_cmp_eq_u32 s39, 1")
    g("s_cbranch_scc0 L_a_nogc")
    g(f"v_lshlrev_b32 {A[2]}, 4, v1")
    g(f"s_mov_b32 s64, {WS_FI}")
    lp = nl("af")
    dn = nl("afd")
    g(f"s_mov_b32 s94, {TMO_G}")
    label(lp)
    g(f"buffer_load_dwordx4 v[{PB}:{PB+3}], {A[2]}, s[52:55], s64 offen sc1")
    g(f"buffer_load_dwordx4 v[{PB+4}:{PB+7}], {A[2]}, s[52:55], s64 offen offset:1024 sc1")
    g("s_waitcnt vmcnt(0)")
    for i in range(8):
        g(f"v_xor_b32 v{PB+i}, s{92+(i&1)}, v{PB+i}")
    for i in range(1, 8):
        g(f"v_or_b32 v{PB}, v{PB}, v{PB+i}")
    g(f"v_cmp_ne_u32 vcc, 0, v{PB}")
    g("s_cmp_eq_u64 vcc, 0")
    g(f"s_cbranch_scc1 {dn}")
    spin_tail(lp, 32)
    label(dn)
    lds_signal(F_GC)
    stamp(4)
    label("L_a_nogc")
    g("s_cmp_lt_u32 s33, 9")
    g("s_cbranch_scc0 L_a_nowo")
    srd(48, 12, 4096 * 576 * 2)
    g(f"v_lshrrev_b32 {A[0]}, 3, v1")
    g(f"v_mul_u32_u24 {A[0]}, 1152, {A[0]}")
    g(f"v_and_b32 {A[1]}, 7, v1")
    g(f"v_lshl_add_u32 {A[10]}, {A[1]}, 4, {A[0]}")
    g(f"s_mul_i32 s68, s30, {256*1152}")
    g("s_lshl_b32 s64, s33, 7")
    g("s_add_u32 s68, s68, s64")
    g(f"s_mul_i32 s64, s39, {64*1152}")
    g("s_add_u32 s68, s68, s64")
    g("s_lshl_b32 s65, s39, 13")
    g(f"s_add_u32 s65, s65, {STG}")
    paced_dma(8, A[10], lambda i: g(f"s_add_u32 m0, s65, {1024*i}"), lambda i: g(f"s_add_u32 s67, s68, {i*8*1152}"))
    lds_signal(F_S1)
    g(f"v_lshl_add_u32 {A[3]}, v5, 7, v38")
    g("s_lshl_b32 s64, s39, 5")
    g(f"v_add_u32 {A[3]}, s64, {A[3]}")
    lds_wait_ge(F_S1, 4, A[0], sleep=2)
    for hb in range(2):
        for s_ in range(4 * hb, 4 * hb + 4):
            r = WO + 4 * s_
            g(f"ds_read_b64_tr_b16 v[{r}:{r+1}], {A[3]} offset:{STG+4096*s_}")
            g(f"ds_read_b64_tr_b16 v[{r+2}:{r+3}], {A[3]} offset:{STG+4096*s_+512}")
        g("s_waitcnt lgkmcnt(0)")
    lds_signal(F_S2)
    lds_wait_ge(F_S2, 4, A[0], sleep=2)
    label("L_a_nowo")
    g("s_cmp_lt_u32 s29, 18")
    g("s_cbranch_scc0 L_a_nowd")
    srd(48, 20, 4608 * 576 * 2)
    g(f"v_lshlrev_b32 {A[10]}, 4, v1")
    g("s_mul_i32 s68, s34, 36864")
    g("s_mul_i32 s64, s39, 9216")
    g("s_add_u32 s68, s68, s64")
    g(f"s_add_u32 s65, s64, {STG}")
    paced_dma(9, A[10], lambda i: g(f"s_add_u32 m0, s65, {1024*i}"), lambda i: g(f"s_add_u32 s67, s68, {i*1024}"))
    lds_signal(F_S3)
    g(f"v_mul_u32_u24 {A[3]}, 1152, v5")
    g(f"v_add_u32 {A[3]}, {A[3]}, v38")
    g("s_mul_i32 s64, s39, 288")
    g(f"v_add_u32 {A[3]}, s64, {A[3]}")
    lds_wait_ge(F_S3, 4, A[0], sleep=2)
    for t0 in (0, 5):
        for t in range(t0, min(t0 + 5, 9)):
            r = WD + 4 * t
            g(f"ds_read_b64_tr_b16 v[{r}:{r+1}], {A[3]} offset:{STG+32*t}")
            g(f"ds_read_b64_tr_b16 v[{r+2}:{r+3}], {A[3]} offset:{STG+32*t+4608}")
        g("s_waitcnt lgkmcnt(0)")
    label("L_a_nowd")
    stamp(3)

    label("L_a_tail")
    lds_wait_ge(F_GC, 1, A[0], sleep=8)
    lds_wait_ge(F_RED, 3, A[0], sleep=4)
    stamp(5, True)
    g("s_cmp_lt_u32 s33, 9")
    g("s_cbranch_scc0 L_a_noT1")
    g(f"v_lshlrev_b32 {A[0]}, 4, v1")
    g("s_lshl_b32 s64, s30, 14")
    g("s_lshl_b32 s67, s39, 12")
    g("s_add_u32 s64, s64, s67")
    g(f"s_add_u32 s64, s64, {WS_OP}")
    g(f"s_mul_i32 s67, s39, {2*OBS}")
    g(f"v_lshl_add_u32 {A[3]}, v1, 3, s67")
    g(f"v_and_b32 {A[4]}, 7, v8")
    g(f"v_mul_u32_u24 {A[4]}, {OBS}, {A[4]}")
    g(f"v_lshl_add_u32 {A[4]}, v7, 4, {A[4]}")
    g(f"v_mul_u32_u24 {A[5]}, 2304, v8")
    g(f"v_lshl_add_u32 {A[5]}, v7, 4, {A[5]}")
    g("s_mul_i32 s71, s30, 18432")
    g("s_lshl_b32 s67, s33, 8")
    g("s_add_u32 s71, s71, s67")
    g("s_lshl_b32 s67, s39, 6")
    g("s_add_u32 s71, s71, s67")
    g(f"s_add_u32 s71, s71, {WS_AOP}")

    def t1loads():
        for k in range(4):
            g(f"buffer_load_dwordx4 v[{PB+4*k}:{PB+4*k+3}], {A[0]}, s[52:55], s64 offen offset:{1024*k} sc1")
    poll_tagged(t1loads, range(PB, PB + 16), [A[1], A[2]], name="t1")
    stamp(6, True)
    for bb in range(2):
        r = PB + 8 * bb
        pk("v_pk_add_f32", r, r, r + 4)
        pk("v_pk_add_f32", r + 2, r + 2, r + 6)
    for bb in range(2):
        r = PB + 8 * bb
        g(f"v_cvt_pk_bf16_f32 v{r}, v{r}, v{r+1}")
        g(f"v_cvt_pk_bf16_f32 v{r+1}, v{r+2}, v{r+3}")
        g(f"ds_write_b64 {A[3]}, v[{r}:{r+1}] offset:{OB+OBS*bb}")
    g("s_waitcnt lgkmcnt(0)")
    g("s_barrier")
    for s in range(8):
        g(f"ds_read_b128 v[{PB+4*s}:{PB+4*s+3}], {A[4]} offset:{OB+64*s}")
    for s in range(8):
        g(f"s_waitcnt lgkmcnt({7-s})")
        d = 56 + 4 * (s & 1)
        c = "0" if s < 2 else f"v[{d}:{d+3}]"
        g(f"v_mfma_f32_16x16x32_bf16 v[{d}:{d+3}], v[{WO+4*s}:{WO+4*s+3}], v[{PB+4*s}:{PB+4*s+3}], {c}")
    exec_mask(0x00FF00FF00FF00FF)
    g("s_nop 6")
    pk("v_pk_add_f32", 56, 56, 60)
    pk("v_pk_add_f32", 58, 58, 62)
    for i in range(4):
        g(f"v_min_u32 v{56+i}, -2, v{56+i}")
    g(f"buffer_store_dwordx4 v[56:59], {A[5]}, s[52:55], s71 offen sc1")
    exec_all()
    label("L_a_noT1")
    stamp(7, True)
    g("s_cmp_eq_u32 s39, 1")
    g("s_cbranch_scc0 L_a_noT2")
    g("s_cmp_ge_u32 s29, 23")
    g("s_cbranch_scc0 L_a_noT2")
    g("s_sub_u32 s64, s29, 23")
    g("s_lshl_b32 s64, s64, 7")
    g("s_mul_i32 s67, s28, 1152")
    g("s_add_u32 s71, s64, s67")
    exec_mask(0xffffffff)
    g(f"v_lshlrev_b32 {A[0]}, 2, v1")
    g(f"v_lshlrev_b32 {A[1]}, 3, v1")
    g(f"buffer_load_dword {A[2]}, {A[0]}, s[60:63], s71 offen")
    g("s_lshl_b32 s67, s71, 1")
    g(f"s_add_u32 s67, s67, {WS_AOP}")
    g(f"s_add_u32 s71, s71, {WS_H}")

    def t2loads():
        for k in range(16):
            g(f"s_add_u32 s64, s67, {18432*k}")
            g(f"buffer_load_dwordx2 v[{PB+2*k}:{PB+2*k+1}], {A[1]}, s[52:55], s64 offen sc1")
    poll_tagged(t2loads, range(PB, PB + 32), [A[3], A[4]], name="t2")
    for st in (8, 4, 2, 1):
        for k in range(st):
            pk("v_pk_add_f32", PB + 2 * k, PB + 2 * k, PB + 2 * (k + st))
    g(f"v_cvt_pk_bf16_f32 {A[3]}, v{PB}, v{PB+1}")
    unpack(A[6], A[7], A[2])
    unpack(A[4], A[5], A[3])
    pk("v_pk_add_f32", 44, 44, 46)
    g(f"v_cvt_pk_bf16_f32 {A[3]}, {A[4]}, {A[5]}")
    g(f"v_min_u32 {A[3]}, -2, {A[3]}")
    g(f"buffer_store_dword {A[3]}, {A[0]}, s[52:55], s71 offen sc1")
    exec_all()
    label("L_a_noT2")
    g("s_cmp_lt_u32 s29, 18")
    g("s_cbranch_scc0 L_a_noT3")
    TA = 240
    g("s_mul_i32 s64, s39, 2304")
    g(f"s_add_u32 s64, s64, {WS_H}")
    g("s_lshr_b32 s67, s39, 1")
    g("s_mul_i32 s67, s67, 576")
    g(f"v_add_u32 v{TA}, s67, v4")
    g("s_and_b32 s67, s39, 1")
    g("s_lshl_b32 s67, s67, 1")
    g("s_lshr_b32 s71, s39, 1")
    g("s_add_u32 s67, s67, s71")
    g("s_lshl_b32 s67, s67, 10")
    g(f"v_lshlrev_b32 v{TA+1}, 7, v8")
    g(f"v_lshl_add_u32 v{TA+1}, v7, 4, v{TA+1}")
    g(f"v_add_u32 v{TA+1}, s67, v{TA+1}")
    g("s_lshl_b32 s67, s39, 8")
    g(f"v_lshl_add_u32 v{TA+2}, v1, 2, s67")
    g(f"v_lshrrev_b32 v{TA+3}, 1, v{TA+2}")
    g(f"v_and_b32 v{TA+4}, 7, v8")
    g(f"v_lshlrev_b32 v{TA+4}, 6, v{TA+4}")
    g(f"v_lshl_add_u32 v{TA+4}, v7, 4, v{TA+4}")
    g(f"v_mul_u32_u24 v{TA+5}, 2304, v8")
    g(f"v_lshl_add_u32 v{TA+5}, v7, 4, v{TA+5}")
    g("s_mul_i32 s65, s34, 18432")
    g("s_mul_i32 s67, s39, 576")
    g("s_add_u32 s65, s65, s67")
    g(f"s_add_u32 s65, s65, {WS_DNP}")
    g("s_mov_b32 s66, 0x3d372713")
    g("s_mov_b32 s67, 0x3f4c422a")
    g("s_mov_b32 s71, 0xc038aa3b")

    def t3loads():
        for i in range(9):
            g(f"buffer_load_dword v{RAW+i}, v9, s[52:55], s64 offen offset:{128*i} sc1")
    poll_tagged(t3loads, range(RAW, RAW + 9), [A[0], A[1]], name="t3")
    stamp(8, True)
    ln_body()
    g("s_waitcnt lgkmcnt(0)")
    g("s_barrier")
    for s_ in range(9):
        g(f"ds_read_b128 v[{PB+4*s_}:{PB+4*s_+3}], v{TA} offset:{XN+64*s_}")
    for s_ in range(9):
        g(f"s_waitcnt lgkmcnt({8-s_})")
        for ct in range(2):
            d = 56 + 4 * ct
            c = "0" if s_ == 0 else f"v[{d}:{d+3}]"
            w = WG + 4 * (2 * s_ + ct)
            g(f"v_mfma_f32_16x16x32_bf16 v[{d}:{d+3}], v[{w}:{w+3}], v[{PB+4*s_}:{PB+4*s_+3}], {c}")
    exec_mask(0x00FF00FF00FF00FF)
    g("s_nop 5")
    g(f"ds_write_b128 v{TA+1}, v[56:59] offset:{RED}")
    g(f"ds_write_b128 v{TA+1}, v[60:63] offset:{RED+64}")
    exec_all()
    g("s_waitcnt lgkmcnt(0)")
    g("s_barrier")
    for q_ in range(4):
        g(f"ds_read_b32 v{40+q_}, v{TA+2} offset:{RED+1024*q_}")
    g("s_waitcnt lgkmcnt(0)")
    g("v_add_f32 v40, v40, v41")
    g("v_add_f32 v42, v42, v43")
    g("v_cvt_pk_bf16_f32 v44, v40, v42")
    unpack("v40", "v42", "v44")
    x = "v40"
    t = "v45"
    g(f"v_mul_f32 {t}, {x}, {x}")
    g(f"v_mul_f32 {t}, {t}, {x}")
    g(f"v_fma_f32 {t}, {t}, s66, {x}")
    g(f"v_mul_f32 {t}, s67, {t}")
    g(f"v_mul_f32 {t}, s71, {t}")
    g(f"v_exp_f32 {t}, {t}")
    g(f"v_mul_f32 {x}, 0.5, {x}")
    g(f"v_add_f32 {t}, 1.0, {t}")
    g(f"v_rcp_f32 {t}, {t}")
    g("s_nop 0")
    g(f"v_add_f32 {t}, {t}, {t}")
    g(f"v_subrev_f32 {t}, 1.0, {t}")
    g(f"v_add_f32 {t}, 1.0, {t}")
    g(f"v_mul_f32 {x}, {x}, {t}")
    g("v_cvt_pk_bf16_f32 v44, v40, v40")
    g("v_lshlrev_b32 v40, 16, v44")
    g("v_mul_f32 v40, v40, v42")
    g("v_cvt_pk_bf16_f32 v44, v40, v40")
    g(f"ds_write_b16 v{TA+3}, v44 offset:{GU}")
    g("s_waitcnt lgkmcnt(0)")
    g("s_barrier")
    g(f"ds_read_b128 v[40:43], v{TA+4} offset:{GU}")
    g("s_waitcnt lgkmcnt(0)")
    for t_ in range(9):
        d = PB + 4 * t_
        g(f"v_mfma_f32_16x16x32_bf16 v[{d}:{d+3}], v[{WD+4*t_}:{WD+4*t_+3}], v[40:43], 0")
    exec_mask(0x00FF00FF00FF00FF)
    for t_ in range(9):
        d = PB + 4 * t_
        for i in range(4):
            g(f"v_min_u32 v{d+i}, -2, v{d+i}")
        g(f"buffer_store_dwordx4 v[{d}:{d+3}], v{TA+5}, s[52:55], s65 offen offset:{64*t_} sc1")
    exec_all()
    label("L_a_noT3")
    if not TSQ:
        stamp(9, True)
    g("s_cmp_eq_u32 s39, 2")
    g("s_cbranch_scc0 L_fin")
    g("s_cmp_ge_u32 s29, 14")
    g("s_cbranch_scc0 L_fin")
    g("s_sub_u32 s64, s29, 14")
    g("s_mul_i32 s67, s28, 1152")
    g("s_lshl_b32 s71, s64, 6")
    g("s_add_u32 s67, s67, s71")
    g(f"s_add_u32 s71, s67, {WS_H}")
    g(f"v_and_b32 {A[0]}, 7, v1")
    g(f"v_lshlrev_b32 {A[1]}, 3, {A[0]}")
    g(f"v_lshrrev_b32 {A[2]}, 3, v1")
    g(f"v_mul_u32_u24 {A[2]}, 18432, {A[2]}")
    g(f"v_lshl_add_u32 {A[2]}, {A[0]}, 4, {A[2]}")
    srd(48, 22, 4608 * 2)
    poll_tagged(lambda: g(f"buffer_load_dwordx2 v[48:49], {A[1]}, s[52:55], s71 offen sc1"),
                range(48, 50), [A[3], A[4]], sleep=4, name="t4h")
    g("s_lshl_b32 s71, s67, 1")
    g(f"s_add_u32 s71, s71, {WS_DNP}")
    G0 = 64

    def t4loads():
        for i in range(18):
            g(f"s_add_u32 s64, s71, {i*147456}")
            g(f"buffer_load_dwordx4 v[{G0+4*i}:{G0+4*i+3}], {A[2]}, s[52:55], s64 offen sc1")
    poll_tagged(t4loads, range(G0, G0 + 72), [A[3], A[4]], name="t4g")
    idx = list(range(18))
    while len(idx) > 1:
        nxt = []
        for k in range(0, len(idx) - 1, 2):
            a_, b_ = G0 + 4 * idx[k], G0 + 4 * idx[k + 1]
            pk("v_pk_add_f32", a_, a_, b_)
            pk("v_pk_add_f32", a_ + 2, a_ + 2, b_ + 2)
            nxt.append(idx[k])
        if len(idx) % 2:
            nxt.append(idx[-1])
        idx = nxt
    g("s_nop 1")
    for k in range(4):
        dpp_op("v_add_f32", f"v{G0+k}", f"v{G0+k}", "row_ror:8")
    for k in range(4):
        g(f"v_mov_b32 v{G0+4+k}, v{G0+k}")
    g("s_nop 1")
    for k in range(4):
        g(f"v_permlane16_swap_b32 v{G0+k}, v{G0+4+k}")
    g("s_nop 1")
    pk("v_pk_add_f32", G0, G0, G0 + 4)
    pk("v_pk_add_f32", G0 + 2, G0 + 2, G0 + 6)
    for k in range(4):
        g(f"v_mov_b32 v{G0+4+k}, v{G0+k}")
    g("s_nop 1")
    for k in range(4):
        g(f"v_permlane32_swap_b32 v{G0+k}, v{G0+4+k}")
    g("s_nop 1")
    pk("v_pk_add_f32", G0, G0, G0 + 4)
    pk("v_pk_add_f32", G0 + 2, G0 + 2, G0 + 6)
    g(f"v_cvt_pk_bf16_f32 v{G0+4}, v{G0}, v{G0+1}")
    g(f"v_cvt_pk_bf16_f32 v{G0+5}, v{G0+2}, v{G0+3}")
    unpack(f"v{G0}", f"v{G0+1}", f"v{G0+4}")
    unpack(f"v{G0+2}", f"v{G0+3}", f"v{G0+5}")
    unpack(f"v{G0+4}", f"v{G0+5}", "v48")
    unpack(f"v{G0+6}", f"v{G0+7}", "v49")
    pk("v_pk_add_f32", G0, G0, G0 + 4)
    pk("v_pk_add_f32", G0 + 2, G0 + 2, G0 + 6)
    g(f"v_cvt_pk_bf16_f32 v{G0+4}, v{G0}, v{G0+1}")
    g(f"v_cvt_pk_bf16_f32 v{G0+5}, v{G0+2}, v{G0+3}")
    g("s_mov_b64 exec, 0xff")
    g(f"buffer_store_dwordx2 v[{G0+4}:{G0+5}], {A[1]}, s[48:51], s67 offen")
    exec_all()
    stamp(4)
    if DBGT:
        g("s_memrealtime s[96:97]")
        g("s_waitcnt lgkmcnt(0)")
        g("v_mov_b32 v40, s96")
        g("s_mov_b64 exec, 1")
        g("buffer_atomic_umax v40, v2, s[56:59], 0 offen offset:20")
        exec_all()
    g("s_branch L_fin")

    label("L_stream")
    VOFF = ["v5", "v6"]
    VKD = "v9"
    KADDR = [f"v{10+i}" for i in range(4)]
    VADDR = [f"v{14+i}" for i in range(16)]
    PADDR = "v30"
    KD = 32
    QV = 128
    VF = 128
    ACC = 160
    KF = 192
    PF = 192
    DG = [208, 212]
    SREG = 216
    T = [f"v{232+i}" for i in range(16)]
    TB = 232

    g(f"s_mul_i32 s65, s3, {R*4096}")
    g(f"s_add_u32 s65, s65, {RING}")
    g("s_lshl_b32 s66, s31, 4")
    g("s_add_u32 s66, s66, s30")
    g("s_lshl_b32 s66, s66, 20")
    g("s_lshl_b32 s64, s32, 19")
    g("s_add_u32 s66, s66, s64")
    g("s_lshl_b32 s64, s3, 12")
    g("s_add_u32 s66, s66, s64")
    g(f"v_lshlrev_b32 {T[0]}, 1, v7")
    g(f"v_xor_b32 {T[1]}, {T[0]}, v8")
    g(f"v_lshlrev_b32 {T[2]}, 8, v7")
    g(f"v_lshl_add_u32 {VOFF[0]}, {T[1]}, 4, {T[2]}")
    g(f"v_xor_b32 {T[1]}, 8, {T[1]}")
    g(f"v_lshl_add_u32 {VOFF[1]}, {T[1]}, 4, {T[2]}")
    g(f"v_lshlrev_b32 {T[0]}, 8, v8")
    g(f"v_lshl_add_u32 {VKD}, v7, 4, {T[0]}")
    g("s_waitcnt lgkmcnt(0)")
    srd(40, 6, 0x8000000)
    srd(44, 8, 0x8000000)
    srd(52, 26, WS_SIZE)
    if DYN:
        srd(56, 24, 256)
        g(f"s_cmp_lt_u32 s29, 18")
        g(f"s_cselect_b32 s68, {Wn+ROLEW}, {Wn}")

    def is_direct(t):
        return R <= t < R + NV

    def tile_slot(t):
        return t if t < R else (t - NV) % R

    def emit_kv_load(t, i):
        srdn = "s[40:43]" if t < 32 else "s[44:47]"
        if is_direct(t):
            if i == 0:
                g(f"s_add_u32 s67, s66, {t*16384}")
            r = KD + 16 * (t - R) + 4 * i
            g(f"buffer_load_dwordx4 v[{r}:{r+3}], {VKD}, {srdn}, s67 offen offset:{i*64} {POL_KV}")
            return
        if i == 0:
            g(f"s_add_u32 m0, s65, {tile_slot(t)*4096}")
            g(f"s_add_u32 s67, s66, {(t % 32)*16384}")
        g(f"buffer_load_dwordx4 {VOFF[i>>1]}, {srdn}, s67 offen offset:{i*1024} {POL_KV} lds")

    def post_group(G):
        d = DG[G & 1]
        g(f"v_cvt_pk_bf16_f32 {T[0]}, v{d}, v{d+1}")
        unpack(T[1], T[2], T[0])
        g(f"v_mul_f32 {T[1]}, s69, {T[1]}")
        g(f"v_mul_f32 {T[2]}, s69, {T[2]}")
        g(f"v_cvt_pk_bf16_f32 {T[0]}, {T[1]}, {T[2]}")
        unpack(f"v{SREG+2*G}", f"v{SREG+2*G+1}", T[0])

    def emit_qgate():
        lds_wait_ge(F_Q, 1, T[0])
        stamp(1)
        for t4 in range(4):
            exec_mask((0x3 << (4 * t4)) * 0x0001000100010001)
            for s in range(4):
                q = QV + 16 * t4 + 4 * s
                g(f"ds_read_b128 v[{q}:{q+3}], {T[10]} offset:{QL+64*s}")
            g("s_waitcnt lgkmcnt(0)")
        exec_all()

    def emit_k_cons(t):
        G, t4 = t >> 2, t & 3
        d = DG[G & 1]
        direct = is_direct(t)
        if not direct:
            off = tile_slot(t) * 4096
            if DYN and CKPT:
                g(f"ds_read_b32 v31, v2 offset:{F_MODE}")
            for s in range(4):
                g(f"ds_read_b128 v[{KF+4*s}:{KF+4*s+3}], {KADDR[s]} offset:{off}")
        if t4 == 0 and G > 0:
            g("s_nop 7" if direct else "s_nop 4")
            post_group(G - 1)
        for s in range(4):
            if not direct:
                g(f"s_waitcnt lgkmcnt({3-s})")
                kr = KF + 4 * s
            else:
                kr = KD + 16 * (t - R) + 4 * s
            q = QV + 16 * t4 + 4 * s
            c = "0" if (t4 == 0 and s == 0) else f"v[{d}:{d+3}]"
            g(f"v_mfma_f32_16x16x32_bf16 v[{d}:{d+3}], v[{q}:{q+3}], v[{kr}:{kr+3}], {c}")
        if DYN and CKPT and not direct:
            g("v_readfirstlane_b32 s68, v31")

    def emit_stats():
        g("s_nop 7")
        g("s_nop 3")
        post_group(7)
        for h in range(2):
            m, t = T[4 + h], T[8]
            S = [f"v{SREG+2*G+h}" for G in range(8)]
            g(f"v_max3_f32 {m}, {S[0]}, {S[1]}, {S[2]}")
            g(f"v_max3_f32 {m}, {m}, {S[3]}, {S[4]}")
            g(f"v_max3_f32 {m}, {m}, {S[5]}, {S[6]}")
            g(f"v_max_f32 {m}, {m}, {S[7]}")
            allreduce("v_max_f32", m, t)
        for h in range(2):
            m, lsum = T[4 + h], T[6 + h]
            for G in range(8):
                S = f"v{SREG+2*G+h}"
                g(f"v_sub_f32 {T[8]}, {S}, {m}")
                g(f"v_mul_f32 {T[8]}, s70, {T[8]}")
                g(f"v_exp_f32 {T[8]}, {T[8]}")
                g("s_nop 0")
                if G == 0:
                    g(f"v_mov_b32 {lsum}, {T[8]}")
                else:
                    g(f"v_add_f32 {lsum}, {lsum}, {T[8]}")
            allreduce("v_add_f32", lsum, T[8])
        g(f"v_mov_b32 {T[12]}, {T[4]}")
        g(f"v_mov_b32 {T[13]}, {T[6]}")
        g(f"v_mov_b32 {T[14]}, {T[5]}")
        g(f"v_mov_b32 {T[15]}, {T[7]}")
        g("s_lshl_b32 s64, s3, 4")
        g(f"v_mov_b32 {T[8]}, s64")
        g("s_mov_b64 exec, 1")
        g(f"ds_write_b128 {T[8]}, v[{TB+12}:{TB+15}] offset:{MLW}")
        g(f"ds_add_rtn_u32 {T[9]}, v2, v3 offset:{F_ML}")
        exec_all()
        g("s_waitcnt lgkmcnt(0)")
        g(f"v_readfirstlane_b32 s64, {T[9]}")
        g("s_cmp_eq_u32 s64, 3")
        g("s_cbranch_scc0 L_s_mlnl")
        for w in range(4):
            g(f"ds_read_b128 v[{32+4*w}:{35+4*w}], v2 offset:{MLW+16*w}")
        g("s_lshl_b32 s64, s38, 6")
        g(f"s_add_u32 s64, s64, {WS_ML}")
        g("s_waitcnt lgkmcnt(0)")
        merge(4, [32 + 4 * w for w in range(4)], 48)
        for i in range(4):
            g(f"v_min_u32 v{48+i}, -2, v{48+i}")
        g("s_mov_b64 exec, 1")
        g(f"buffer_store_dwordx4 v[48:51], v2, s[52:55], s64 offen sc1")
        g(f"ds_write_b128 v2, v[48:51] offset:{MLR}")
        g(f"ds_add_u32 v2, v3 offset:{F_MLO}")
        exec_all()
        label("L_s_mlnl")
        stamp(2)

    def merge(n, src, dst):
        for h in range(2):
            ms = [f"v{b+2*h}" for b in src]
            ls = [f"v{b+2*h+1}" for b in src]
            M = f"v{56+h}"
            g(f"v_max_f32 {M}, {ms[0]}, {ms[1]}")
            for k in range(2, n):
                g(f"v_max_f32 {M}, {M}, {ms[k]}")
            Ls = f"v{58+h}"
            for k in range(n):
                g(f"v_sub_f32 v60, {ms[k]}, {M}")
                g("v_mul_f32 v60, s70, v60")
                g("v_exp_f32 v60, v60")
                g("s_nop 0")
                if k == 0:
                    g(f"v_mul_f32 {Ls}, v60, {ls[k]}")
                else:
                    g(f"v_fmac_f32 {Ls}, v60, {ls[k]}")
        g(f"v_mov_b32 v{dst}, v56")
        g(f"v_mov_b32 v{dst+1}, v58")
        g(f"v_mov_b32 v{dst+2}, v57")
        g(f"v_mov_b32 v{dst+3}, v59")

    def emit_pgate():
        lds_wait_ge(F_GC, 1, T[0])
        g("s_lshl_b32 s64, s38, 6")
        g(f"s_add_u32 s64, s64, {WS_ML}")
        g("s_xor_b32 s64, s64, 64")
        poll_tagged(lambda: g("buffer_load_dwordx4 v[36:39], v2, s[52:55], s64 offen sc1"),
                    range(36, 40), [T[0], T[1]], sleep=1, name="ml")
        lds_wait_ge(F_MLO, 1, T[0])
        stamp(3)
        g(f"ds_read_b128 v[32:35], v2 offset:{MLR}")
        g("s_cmp_eq_u32 s32, 0")
        g("s_cselect_b64 vcc, -1, 0")
        g("s_waitcnt lgkmcnt(0)")
        for i in range(4):
            g(f"v_cndmask_b32 v{40+i}, v{36+i}, v{32+i}, vcc")
            g(f"v_cndmask_b32 v{44+i}, v{32+i}, v{36+i}, vcc")
        merge(2, [40, 44], TB + 12)
        for h in range(2):
            l_ = T[13 + 2 * h]
            g(f"v_rcp_f32 {T[0]}, {l_}")
            g("s_nop 0")
            g(f"v_fma_f32 {T[1]}, -{l_}, {T[0]}, 1.0")
            g(f"v_fma_f32 {l_}, {T[1]}, {T[0]}, {T[0]}")
        g("s_lshl_b32 s64, s3, 11")
        g(f"s_add_u32 s64, s64, {PBUF}")
        g(f"v_lshl_add_u32 {T[9]}, v1, 1, s64")
        for G in range(8):
            for h in range(2):
                S = f"v{SREG+2*G+h}"
                g(f"v_sub_f32 {T[h]}, {S}, {T[12+2*h]}")
                g(f"v_mul_f32 {T[h]}, s70, {T[h]}")
                g(f"v_exp_f32 {T[h]}, {T[h]}")
            g("s_nop 0")
            g(f"v_mul_f32 {T[0]}, {T[0]}, {T[13]}")
            g(f"v_mul_f32 {T[1]}, {T[1]}, {T[15]}")
            g(f"v_cvt_pk_bf16_f32 {T[2+(G&1)]}, {T[0]}, {T[1]}")
            g(f"ds_write_b16 {T[9]}, {T[2+(G&1)]} offset:{G*128}")
            g(f"ds_write_b16_d16_hi {T[9]}, {T[2+(G&1)]} offset:{1024+G*128}")
        g("s_waitcnt lgkmcnt(0)")

    def emit_v_cons(u):
        off = tile_slot(32 + 2 * u) * 4096
        assert tile_slot(33 + 2 * u) == tile_slot(32 + 2 * u) + 1
        if DYN and CKPT:
            g(f"ds_read_b32 v31, v2 offset:{F_MODE}")
        g(f"ds_read_b128 v[{PF}:{PF+3}], {PADDR} offset:{u*64}")
        for hb in range(2):
            for nt in range(4 * hb, 4 * hb + 4):
                r = VF + 4 * nt
                g(f"ds_read_b64_tr_b16 v[{r}:{r+1}], {VADDR[2*nt]} offset:{off}")
                g(f"ds_read_b64_tr_b16 v[{r+2}:{r+3}], {VADDR[2*nt+1]} offset:{off}")
            for k, nt in enumerate(range(4 * hb, 4 * hb + 4)):
                r = VF + 4 * nt
                a = ACC + 4 * nt
                g(f"s_waitcnt lgkmcnt({6-2*k})")
                c = "0" if u == 0 else f"v[{a}:{a+3}]"
                g(f"v_mfma_f32_16x16x32_bf16 v[{a}:{a+3}], v[{r}:{r+3}], v[{PF}:{PF+3}], {c}")
        if DYN and CKPT:
            g("v_readfirstlane_b32 s68, v31")

    def emit_setup():
        g("s_barrier")
        g(f"v_and_b32 {T[0]}, 3, v8")
        g(f"v_lshrrev_b32 {T[1]}, 3, v8")
        g(f"v_lshl_add_u32 {T[0]}, {T[1]}, 2, {T[0]}")
        g(f"v_lshlrev_b32 {T[0]}, 1, {T[0]}")
        g(f"v_lshlrev_b32 {T[2]}, 8, v8")
        g(f"v_add_u32 {T[2]}, s65, {T[2]}")
        for s in range(4):
            g(f"v_add_u32 {T[1]}, {4*s}, v7")
            g(f"v_xor_b32 {T[1]}, {T[1]}, {T[0]}")
            g(f"v_lshl_add_u32 {KADDR[s]}, {T[1]}, 4, {T[2]}")
        g(f"v_bfe_u32 {T[0]}, v1, 2, 2")
        g(f"v_and_b32 {T[1]}, 1, v7")
        g(f"v_lshl_add_u32 {T[3]}, {T[1]}, 2, {T[0]}")
        g(f"v_lshl_add_u32 {T[4]}, {T[1]}, 3, {T[0]}")
        g(f"v_lshlrev_b32 {T[4]}, 8, {T[4]}")
        g(f"v_lshrrev_b32 {T[5]}, 1, v7")
        g(f"v_lshl_add_u32 {T[4]}, {T[5]}, 12, {T[4]}")
        g(f"v_and_b32 {T[5]}, 3, v1")
        g(f"v_lshl_add_u32 {T[4]}, {T[5]}, 3, {T[4]}")
        g(f"v_add_u32 {T[4]}, s65, {T[4]}")
        for nt in range(8):
            g(f"v_xor_b32 {T[5]}, {nt}, {T[3]}")
            g(f"v_lshl_add_u32 {VADDR[2*nt]}, {T[5]}, 5, {T[4]}")
            g(f"v_add_u32 {VADDR[2*nt+1]}, 1024, {VADDR[2*nt]}")
        g("s_lshl_b32 s64, s3, 11")
        g(f"s_add_u32 s64, s64, {PBUF}")
        g(f"v_and_b32 {T[0]}, 1, v8")
        g(f"v_lshlrev_b32 {T[1]}, 10, {T[0]}")
        g(f"v_lshl_add_u32 {T[1]}, v7, 4, {T[1]}")
        g(f"v_add_u32 {PADDR}, s64, {T[1]}")
        g(f"s_mov_b32 s69, {hex(SCALE)}")
        g(f"s_mov_b32 s70, {hex(LOG2E)}")
        for i in range(64):
            g(f"v_mov_b32 v{QV+i}, 0")
        g(f"v_lshlrev_b32 {T[0]}, 8, {T[0]}")
        g(f"v_lshl_add_u32 {T[10]}, v7, 4, {T[0]}")

    loads = []
    for t in range(64):
        for i in range(4):
            sl = set() if is_direct(t) else {tile_slot(t) * 4 + i}
            loads.append((lambda t=t, i=i: emit_kv_load(t, i), sl))
    cons = [dict(need=-1, gate="q", frees=set(), emit=emit_qgate)]
    for t in range(32):
        fr = set() if is_direct(t) else {tile_slot(t) * 4 + i for i in range(4)}
        cons.append(dict(need=4 * t + 3, gate=None, frees=fr, emit=(lambda t=t: emit_k_cons(t))))
    cons.append(dict(need=127, gate=None, frees=set(), emit=emit_stats))
    cons.append(dict(need=127, gate="ml", frees=set(), emit=emit_pgate))
    for u in range(16):
        t = 32 + 2 * u
        cons.append(dict(need=4 * t + 7, gate=None,
                         frees={tile_slot(t) * 4 + i for i in range(4)} | {tile_slot(t + 1) * 4 + i for i in range(4)},
                         emit=(lambda u=u: emit_v_cons(u))))

    landed = -1
    ci = 0
    issued = 0

    def do_cons(c):
        nonlocal landed
        if c["need"] > landed:
            g(f"s_waitcnt vmcnt({issued - 1 - c['need']})")
            landed = c["need"]
        c["emit"]()

    for n in range(len(loads)):
        if n == W0:
            emit_setup()
        slots = loads[n][1]
        last = -1
        for k in range(ci, len(cons)):
            if cons[k]["frees"] & slots and cons[k]["need"] < n:
                last = k
        while ci <= last:
            do_cons(cons[ci])
            ci += 1
        w = W0 if n < 4 * (R + NV) else Wn
        if Wend and n >= 4 * Tend:
            w = Wend
        if DYN and n >= 8 and (CKPT or n < 4 * TROLE):
            wmin, wmax = DYN
            if n - wmax > landed:
                g(f"s_waitcnt vmcnt({wmax-1})")
                landed = n - wmax
            go = nl("go")
            for ww in range(wmax - 1, wmin - 1, -1):
                if n - ww > landed:
                    g(f"s_cmp_gt_u32 s68, {ww}")
                    g(f"s_cbranch_scc1 {go}")
                    g(f"s_waitcnt vmcnt({ww-1})")
            label(go)
            if n % 4 == 0 and (n // 4) in CKPT:
                ck = CKPT.index(n // 4)
                sk = nl("ck")
                g("s_cmp_eq_u32 s3, 0")
                g(f"s_cbranch_scc0 {sk}")
                g("v_mov_b32 v4, 1")
                g("s_mov_b64 exec, 1")
                g(f"buffer_atomic_add v4, v2, s[56:59], 0 offen offset:{64+4*ck} sc0")
                exec_all()
                label(sk)
            if n % 4 == 0 and (n // 4 - 3) in CKPT:
                sk = nl("ck")
                g("s_cmp_eq_u32 s3, 0")
                g(f"s_cbranch_scc0 {sk}")
                g("v_readfirstlane_b32 s64, v4")
                g(f"s_mov_b32 s71, {THR[-1][1]}")
                for (lim, wv) in reversed(THR[:-1]):
                    g(f"s_cmp_lt_u32 s64, {lim}")
                    g(f"s_cselect_b32 s71, {wv}, s71")
                g("v_mov_b32 v4, s71")
                g(f"ds_write_b32 v2, v4 offset:{F_MODE}")
                label(sk)
        elif n - w > landed:
            g(f"s_waitcnt vmcnt({w-1})")
            landed = n - w
        loads[n][0]()
        issued = n + 1
        k = 0
        while ci < len(cons) and k < maxper and cons[ci]["need"] <= landed and not cons[ci]["gate"]:
            do_cons(cons[ci])
            ci += 1
            k += 1
    while ci < len(cons):
        do_cons(cons[ci])
        ci += 1
    stamp(4)

    g("s_lshl_b32 s64, s3, 10")
    g(f"v_lshlrev_b32 {T[0]}, 9, v8")
    g(f"v_lshl_add_u32 {T[0]}, v7, 4, {T[0]}")
    g(f"v_add_u32 {T[0]}, s64, {T[0]}")
    g(f"v_lshlrev_b32 {T[2]}, 4, v1")
    g("s_lshl_b32 s64, s38, 10")
    g(f"s_add_u32 s64, s64, {WS_OP}")
    exec_mask(0x0003000300030003)
    for nt in range(8):
        a = ACC + 4 * nt
        if nt == 6:
            g("s_nop 3")
        g(f"ds_write_b128 {T[0]}, v[{a}:{a+3}] offset:{RED+64*nt}")
    g("s_mov_b64 exec, 1")
    g(f"ds_add_rtn_u32 {T[1]}, v2, v3 offset:{F_RED}")
    exec_all()
    g("s_waitcnt lgkmcnt(0)")
    g(f"v_readfirstlane_b32 s67, {T[1]}")
    g("s_cmp_eq_u32 s67, 3")
    g("s_cbranch_scc0 L_s_notlast")
    for w in range(4):
        g(f"ds_read_b128 v[{32+4*w}:{35+4*w}], {T[2]} offset:{RED+1024*w}")
    g("s_waitcnt lgkmcnt(2)")
    pk("v_pk_add_f32", 32, 32, 36)
    pk("v_pk_add_f32", 34, 34, 38)
    g("s_waitcnt lgkmcnt(0)")
    pk("v_pk_add_f32", 40, 40, 44)
    pk("v_pk_add_f32", 42, 42, 46)
    pk("v_pk_add_f32", 32, 32, 40)
    pk("v_pk_add_f32", 34, 34, 42)
    for i in range(4):
        g(f"v_min_u32 v{32+i}, -2, v{32+i}")
    g(f"buffer_store_dwordx4 v[32:35], {T[2]}, s[52:55], s64 offen sc1")
    label("L_s_notlast")
    stamp(5)

    label("L_fin")
    if TS:
        g("s_waitcnt lgkmcnt(0)")
        g("s_lshl_b32 s64, s2, 3")
        g("s_add_u32 s64, s64, s3")
        g("s_lshl_b32 s64, s64, 7")
        g(f"s_add_u32 s64, s64, {WS_TS}")
        g("s_mov_b64 exec, 1")
        for i in range(10):
            g(f"v_mov_b32 v32, s{72+2*i}")
            g(f"v_mov_b32 v33, s{73+2*i}")
            g(f"buffer_store_dwordx2 v[32:33], v2, s[52:55], s64 offen offset:{8*i}")
            g("s_nop 1")
    label("L_end")
    g("s_endpgm")
    L.append('.section .rodata,"a"')
    L.append(".p2align 6")
    L.append(f".amdhsa_kernel {KN}")
    L.append("  .amdhsa_next_free_vgpr 256")
    L.append("  .amdhsa_next_free_sgpr 100")
    L.append("  .amdhsa_accum_offset 256")
    L.append("  .amdhsa_group_segment_fixed_size 0")
    L.append("  .amdhsa_kernarg_size 96")
    L.append("  .amdhsa_user_sgpr_count 2")
    L.append("  .amdhsa_user_sgpr_kernarg_segment_ptr 1")
    L.append("  .amdhsa_system_sgpr_workgroup_id_x 1")
    L.append("  .amdhsa_float_denorm_mode_32 3")
    L.append("  .amdhsa_float_denorm_mode_16_64 3")
    L.append(".end_amdhsa_kernel")
    return "\n".join(L) + "\n"


if __name__ == "__main__":
    kw = eval("dict(" + (sys.argv[1] if len(sys.argv) > 1 else "") + ")")
    sys.stdout.write(gen(**kw))
```
